```python
import torch

def _softmax(x, axis=-1):
    return torch.softmax(x, dim=axis)
def _gelu(x):
    return torch.nn.functional.gelu(x, approximate="tanh")
def _silu(x):
    return torch.nn.functional.silu(x)
def _sigmoid(x):
    return torch.sigmoid(x)
def _layernorm(x, axis=-1, eps=1e-5):
    m = x.mean(dim=axis, keepdim=True)
    v = x.var(dim=axis, keepdim=True, unbiased=False)
    return (x - m) / torch.sqrt(v + eps)
def _scatter_add(tgt, idx, src, axis=0):
    return tgt.clone().index_add_(axis, idx, src)
def _segment_sum(src, seg, n):
    out = torch.zeros((n,) + src.shape[1:], dtype=src.dtype)
    return out.index_add_(0, seg, src)
def _pad(x, pw):
    flat = tuple(v for pair in reversed(pw) for v in pair)
    return torch.nn.functional.pad(x, flat)

kernel_name = 'parallel_sum__linear_kernel_hedgehog__dense_activation_relu__prompt'

def setup_inputs():

    _w = (lambda a: (lambda t: t.to(torch.bfloat16) if t.is_floating_point() else t)(torch.as_tensor(a)))
    def _A_setup():
        B, S, D, H = 1, 2048, 640, 32
        Dh = D // H
        return {
            "x": _w((lambda *s: torch.randn(*s, dtype=torch.bfloat16) * 0.05)(B, S, D)),
            "wqkv": _w((lambda *s: torch.randn(*s, dtype=torch.bfloat16) * 0.4)(D, 3 * D)),
            "w_phi": _w((lambda *s: torch.randn(*s, dtype=torch.bfloat16) * 0.4)(H, Dh, Dh) * (Dh ** -0.5)),
            "wo": _w((lambda *s: torch.randn(*s, dtype=torch.bfloat16) * 0.1)(D, D)),
        }
    _A_in = _A_setup()

    def _B_setup():
        B, S, D, Dff = 1, 2048, 640, 1728
        return {
            "x": _w((lambda *s: torch.randn(*s, dtype=torch.bfloat16) * 0.05)(B, S, D)),
            "w1": _w((lambda *s: torch.randn(*s, dtype=torch.bfloat16) * 0.05)(D, Dff)),
            "w2": _w((lambda *s: torch.randn(*s, dtype=torch.bfloat16) * 0.05)(Dff, D)),
        }
    _B_in = _B_setup()

    return {
        "A_x": _A_in["x"],
        "A_wqkv": _A_in["wqkv"],
        "A_w_phi": _A_in["w_phi"],
        "A_wo": _A_in["wo"],
        "B_x": _B_in["x"],
        "B_w1": _B_in["w1"],
        "B_w2": _B_in["w2"],
    }

def reference(A_x, A_wqkv, A_w_phi, A_wo, B_x, B_w1, B_w2):
    def _A_ref(x, wqkv, w_phi, wo):
        B, S, D = x.shape
        H = 32; Dh = D // H
        qkv = (lambda x, *d: x.permute(*d))((x @ wqkv).reshape(B, S, 3, H, Dh), 2, 0, 3, 1, 4)
        q, k, v = qkv[0], qkv[1], qkv[2]
        pq = torch.einsum("bhsd,hdf->bhsf", q, w_phi)
        pk = torch.einsum("bhsd,hdf->bhsf", k, w_phi)
        phi_q = torch.concatenate([_softmax(pq, axis=-1), _softmax(-pq, axis=-1)], axis=-1)
        phi_k = torch.concatenate([_softmax(pk, axis=-1), _softmax(-pk, axis=-1)], axis=-1)
        kv = torch.einsum("bhsf,bhsd->bhfd", phi_k, v)
        z  = torch.einsum("bhsf->bhf", phi_k)
        num = torch.einsum("bhqf,bhfd->bhqd", phi_q, kv)
        den = torch.einsum("bhqf,bhf->bhq", phi_q, z)[..., None] + 1e-6
        o = num / den
        return (lambda x, *d: x.permute(*d))(o, 0, 2, 1, 3).reshape(B, S, D) @ wo

    def _B_ref(x, w1, w2):
        h = torch.einsum("bsd,df->bsf", x, w1)
        zero = torch.zeros_like(h)
        h = torch.maximum(h, zero)
        return torch.einsum("bsf,fd->bsd", h, w2)

    x = A_x
    xn = _layernorm(x, axis=-1)
    return x + _A_ref(xn, A_wqkv, A_w_phi, A_wo) + _B_ref(xn, B_w1, B_w2)
```

```python
import re

REG_RE = re.compile(r'^(-|\|)?(v|s|a)(\d+|\[(\d+):(\d+)\])\|?$')

def parse_reg(tok):
    tok = tok.strip()
    if tok.startswith('-'): tok = tok[1:]
    m = re.match(r'^abs\((.*)\)$', tok)
    if m: tok = m.group(1)
    if tok in ('vcc',): return ('s', {'vcc_lo', 'vcc_hi'})
    if tok in ('vcc_lo', 'vcc_hi', 'm0', 'exec_lo', 'exec_hi', 'scc'): return ('s', {tok})
    if tok == 'exec': return ('s', {'exec_lo', 'exec_hi'})
    m = re.match(r'^(v|s|a)(\d+)$', tok)
    if m: return (m.group(1), {int(m.group(2))})
    m = re.match(r'^(v|s|a)\[(\d+):(\d+)\]$', tok)
    if m: return (m.group(1), set(range(int(m.group(2)), int(m.group(3)) + 1)))
    return None

TRANS = ('v_exp_f32', 'v_log_f32', 'v_rcp_f32', 'v_rsq_f32', 'v_sqrt_f32', 'v_sin_f32', 'v_cos_f32', 'v_rcp_iflag_f32')

class Ins:
    __slots__ = ('text', 'op', 'kind', 'wv', 'rv', 'ws', 'rs', 'passes', 'srcC', 'states', 'dpp', 'wide_store', 'lds_dma', 'isnop')

def split_ops(s):
    out, depth, cur = [], 0, ''
    for ch in s:
        if ch in '[(': depth += 1
        if ch in '])': depth -= 1
        if ch == ',' and depth == 0:
            out.append(cur.strip()); cur = ''
        else:
            cur += ch
    if cur.strip(): out.append(cur.strip())
    return out

def vset(kind, idx):
    return {(kind, i) for i in idx}

def analyze(text):
    ins = Ins(); ins.text = text
    t = text.split(';')[0].strip()
    parts = t.split(None, 1)
    op = parts[0]; rest = parts[1] if len(parts) > 1 else ''
    ins.op = op; ins.wv = set(); ins.rv = set(); ins.ws = set(); ins.rs = set()
    ins.passes = 0; ins.srcC = set(); ins.states = 1; ins.dpp = False; ins.wide_store = False; ins.lds_dma = False; ins.isnop = False
    ops = split_ops(rest)
    mods = []
    if ops:
        last = ops[-1].split()
        if len(last) > 1:
            ops[-1] = last[0]; mods = last[1:]
    def R(tok, into_v, into_s):
        r = parse_reg(tok)
        if r is None: return
        if r[0] in 'va': into_v |= vset(r[0], r[1])
        else: into_s |= r[1]
    def rd(tok): R(tok, ins.rv, ins.rs)
    def wr(tok): R(tok, ins.wv, ins.ws)
    if op == 's_nop':
        ins.kind = 'nop'; ins.states = int(ops[0], 0) + 1; ins.isnop = True
    elif op.startswith('v_mfma'):
        ins.kind = 'mfma'
        ins.passes = 8 if '32x32x16' in op else (4 if '16x16x32' in op else 16)
        wr(ops[0]); rd(ops[1]); rd(ops[2]); rd(ops[3])
        r = parse_reg(ops[3])
        if r and r[0] in 'va': ins.srcC = vset(r[0], r[1])
    elif op.startswith('v_cmp'):
        ins.kind = 'valu'; wr(ops[0])
        for o in ops[1:]: rd(o)
        if op.startswith('v_cmpx'): ins.ws |= {'exec_lo', 'exec_hi'}
    elif op.startswith('v_readfirstlane') or op.startswith('v_readlane'):
        ins.kind = 'valu_rl'; wr(ops[0])
        for o in ops[1:]: rd(o)
    elif op.startswith('v_permlane') and 'swap' in op:
        ins.kind = 'valu_perm'
        for o in ops[:2]: rd(o); wr(o)
    elif op.startswith('v_'):
        ins.kind = 'trans' if op.replace('_e32', '').replace('_e64', '') in TRANS else 'valu'
        wr(ops[0])
        start = 1
        if op.startswith(('v_add_co', 'v_sub_co', 'v_addc_co', 'v_subb_co', 'v_subrev_co')):
            wr(ops[1]); start = 2
        for o in ops[start:]: rd(o)
        if op.startswith(('v_fmac', 'v_dot2c', 'v_pk_fmac', 'v_writelane')): rd(ops[0])
        if op.startswith('v_cndmask') and len(ops) == 3: ins.rs |= {'vcc_lo', 'vcc_hi'}
        if 'dpp' in op or any(m.startswith(('quad_perm', 'row_', 'wave_')) for m in mods): ins.dpp = True
        if any(m.startswith(('quad_perm', 'row_')) for m in rest.split()): ins.dpp = True
    elif op.startswith('ds_'):
        ins.kind = 'ds'
        if op.startswith(('ds_read', 'ds_bpermute', 'ds_permute', 'ds_swizzle')):
            wr(ops[0])
            for o in ops[1:]: rd(o)
        else:
            for o in ops: rd(o)
    elif op.startswith('buffer_'):
        ins.kind = 'vmem'
        if op in ('buffer_wbl2', 'buffer_inv'):
            pass
        elif 'lds' in mods:
            ins.lds_dma = True
            for o in ops: rd(o)
            ins.rs.add('m0')
        elif op.startswith('buffer_load'):
            wr(ops[0])
            for o in ops[1:]: rd(o)
        elif op.startswith('buffer_atomic'):
            for o in ops: rd(o)
            if 'sc0' in mods: wr(ops[0])
        else:
            for o in ops: rd(o)
            if 'x3' in op or 'x4' in op: ins.wide_store = parse_reg(ops[0])
    elif op.startswith('global_'):
        ins.kind = 'vmem'
        if op.startswith('global_load'):
            wr(ops[0])
            for o in ops[1:]: rd(o)
        elif op.startswith('global_atomic'):
            if 'sc0' in mods:
                wr(ops[0])
                for o in ops[1:]: rd(o)
            else:
                for o in ops: rd(o)
        else:
            for o in ops: rd(o)
            if 'x3' in op or 'x4' in op: ins.wide_store = parse_reg(ops[1])
    elif op.startswith('s_'):
        ins.kind = 'salu'
        if op.startswith(('s_cmp', 's_bitcmp', 's_cbranch', 's_branch', 's_waitcnt', 's_barrier', 's_endpgm', 's_sleep', 's_setprio', 's_sethalt')):
            for o in ops: rd(o)
        elif op.startswith('s_load') or op.startswith('s_memtime') or op.startswith('s_memrealtime'):
            ins.kind = 'smem'
            wr(ops[0])
            for o in ops[1:]: rd(o)
        else:
            if ops: wr(ops[0])
            for o in ops[1:]: rd(o)
            if 'saveexec' in op:
                ins.ws |= {'exec_lo', 'exec_hi'}; ins.rs |= {'exec_lo', 'exec_hi'}
    else:
        raise ValueError('unknown op ' + text)
    return ins

XDL_D_TO_VALU = {2: 5, 4: 8, 8: 12, 16: 20}
XDL_D_TO_AB = {2: 5, 4: 8, 8: 12, 16: 20}
XDL_D_TO_C_OVERLAP = {2: 4, 4: 6, 8: 10, 16: 18}
XDL_C_WAR = {2: 1, 4: 3, 8: 7, 16: 15}

def required(p, c):
    n = 0
    isvalu_p = p.kind in ('valu', 'trans', 'valu_rl', 'valu_perm')
    isvalu_c = c.kind in ('valu', 'trans', 'valu_rl', 'valu_perm')
    if isvalu_p:
        if p.wv & c.rv:
            if c.kind == 'mfma': n = max(n, 2)
            if c.kind == 'valu_rl': n = max(n, 1)
            if c.kind == 'valu_perm': n = max(n, 2)
            if c.dpp: n = max(n, 2)
            if p.kind == 'trans' and c.kind != 'trans' and (isvalu_c or c.kind == 'mfma'): n = max(n, 1)
        if p.ws:
            if c.kind == 'vmem' and (p.ws & c.rs): n = max(n, 5)
            if isvalu_c and (p.ws & c.rs):
                n = max(n, 4 if c.kind == 'valu_rl' else 2)
            if p.ws & {'exec_lo', 'exec_hi'}:
                if c.kind == 'mfma': n = max(n, 4)
                if c.dpp: n = max(n, 5)
                if c.kind in ('valu_rl', 'valu_perm'): n = max(n, 4)
            if c.kind == 'salu' and (p.ws & c.rs): n = max(n, 1)
    if p.kind == 'salu':
        if 'm0' in p.ws and (c.lds_dma or 'm0' in c.rs and c.kind != 'salu'): n = max(n, 1)
        if (p.ws & {'exec_lo', 'exec_hi'}) and c.dpp: n = max(n, 0)
    if p.kind == 'mfma':
        ps = p.passes
        if c.kind == 'mfma':
            ab = c.rv - c.srcC
            if p.wv & ab: n = max(n, XDL_D_TO_AB[ps])
            if p.wv & c.srcC:
                if not (p.wv == c.srcC and c.passes == ps): n = max(n, XDL_D_TO_C_OVERLAP[ps])
                elif ps == 2: n = max(n, 2)
            if (p.wv & c.wv) and not (p.wv & c.srcC): n = max(n, XDL_D_TO_C_OVERLAP[ps])
        else:
            if (p.wv & c.rv) or (p.wv & c.wv): n = max(n, XDL_D_TO_VALU[ps])
            if isvalu_c and (p.srcC & c.wv): n = max(n, XDL_C_WAR[ps])
    if p.wide_store and isvalu_c:
        k, idx = p.wide_store
        if vset(k, idx) & c.wv: n = max(n, 2)
    elif p.wide_store and (c.wv):
        k, idx = p.wide_store
        if vset(k, idx) & c.wv: n = max(n, 1)
    return n

class Asm:
    def __init__(self):
        self.lines = []
        self.window = []
        self.nops_inserted = 0
    def raw(self, text):
        self.lines.append(text)
    def comment(self, text):
        self.lines.append('    ; ' + text)
    def label(self, name, flush=True):
        self.lines.append(name + ':')
    def fence(self, n=None):
        need = 0
        dist = 0
        for p in reversed(self.window):
            worst = 0
            if p.kind == 'mfma': worst = XDL_D_TO_VALU[p.passes]
            elif p.kind in ('valu', 'trans', 'valu_rl', 'valu_perm'): worst = 5 if p.ws else 2
            elif p.kind == 'salu' and 'm0' in p.ws: worst = 1
            elif p.wide_store: worst = 2
            need = max(need, worst - dist)
            dist += p.states
            if dist > 24: break
        if need > 0: self.nop(need)
    def nop(self, n):
        while n > 0:
            k = min(n, 16)
            self._push(analyze(f's_nop {k-1}'))
            n -= k
    def _push(self, ins):
        self.lines.append('    ' + ins.text)
        self.window.append(ins)
        if len(self.window) > 40: self.window.pop(0)
    def __call__(self, text):
        for ln in text.split('\n'):
            ln = ln.strip()
            if not ln or ln.startswith(';'):
                if ln: self.lines.append('    ' + ln)
                continue
            ins = analyze(ln)
            need = 0; dist = 0
            for p in reversed(self.window):
                r = required(p, ins)
                if r > dist: need = max(need, r - dist)
                dist += p.states
                if dist > 24: break
            if need > 0:
                self.nops_inserted += need
                self.nop(need)
            self._push(ins)
    def text(self):
        return '\n'.join(self.lines) + '\n'

def vr(a, n=1):
    return f'v{a}' if n == 1 else f'v[{a}:{a+n-1}]'
def sr(a, n=1):
    return f's{a}' if n == 1 else f's[{a}:{a+n-1}]'
def ar(a, n=1):
    return f'a{a}' if n == 1 else f'a[{a}:{a+n-1}]'

def kernel_header(name):
    return [f'.globl {name}', '.p2align 8', f'.type {name},@function', f'{name}:']

def kernel_desc(name, vgpr, sgpr=96, accum=None):
    acc = accum if accum is not None else ((vgpr + 3) // 4) * 4
    return ['.p2align 6', f'.amdhsa_kernel {name}', f'  .amdhsa_next_free_vgpr {vgpr}', f'  .amdhsa_next_free_sgpr {sgpr}',
            f'  .amdhsa_accum_offset {acc}', '  .amdhsa_group_segment_fixed_size 0', '  .amdhsa_kernarg_size 80',
            '  .amdhsa_user_sgpr_count 2', '  .amdhsa_user_sgpr_kernarg_segment_ptr 1', '  .amdhsa_system_sgpr_workgroup_id_x 1',
            '  .amdhsa_float_denorm_mode_32 3', '.end_amdhsa_kernel']
```

```python
from asmlib import *

WS_STATS = 0x0
WS_AF    = 0x100000
AF_RB    = 74 * 4096
WS_WF    = 0xB00000
WF_J     = 74 * 5120
WS_PQ    = 0xE00000
PQ_HEAD  = 64 * 2560
WS_P32   = 0x1400000
P32_RB   = 32 * 3360
WS_CSP   = 0x15B0000
WS_CNT   = 0x15F0000
WS_END   = 0x1600000
assert WS_P32 + 16*P32_RB <= WS_CSP and WS_CSP + 15*16*1024 <= WS_CNT
WS_PROF = 0x1700000
WS_END_PROF = WS_PROF + 4*256*8*64

LOG2E_BITS = 0x3fb8aa3b
KA_X, KA_WQKV, KA_WPHI, KA_WO, KA_BX, KA_W1, KA_W2, KA_OUT, KA_DBG, KA_WS = [8*i for i in range(10)]

class G:
    PROF = False
    OPT = {}
def opt(k, d=None): return G.OPT.get(k, d)

def srd(a, base_s, lo, hi, nrec):
    if base_s != lo: a(f"s_mov_b32 s{base_s}, s{lo}")
    a(f"s_and_b32 s{base_s+1}, s{hi}, 0xffff")
    a(f"s_mov_b32 s{base_s+2}, {nrec}")
    a(f"s_mov_b32 s{base_s+3}, 0x20000")

def srd_off(a, base_s, lo, hi, off_s, nrec):
    a(f"s_add_u32 s{base_s}, s{lo}, s{off_s}")
    a(f"s_addc_u32 s{base_s+1}, s{hi}, 0")
    a(f"s_and_b32 s{base_s+1}, s{base_s+1}, 0xffff")
    a(f"s_mov_b32 s{base_s+2}, {nrec}")
    a(f"s_mov_b32 s{base_s+3}, 0x20000")

def stamp(a, i, wait=True):
    if not G.PROF or i >= 10: return
    a(f"s_memrealtime s[{80+2*i}:{81+2*i}]")
    if wait: a("s_waitcnt lgkmcnt(0)")

def cstamp(a, i):
    if not G.PROF or i >= 10: return
    a(f"s_memtime s[{80+2*i}:{81+2*i}]")
    a("s_waitcnt lgkmcnt(0)")

def stamp_flush(a, kidx, nst, wave_s, wsp):
    if not G.PROF: return
    a("s_waitcnt lgkmcnt(0)")
    a(f"s_lshl_b32 s78, s2, 3")
    a(f"s_add_u32 s78, s78, s{wave_s}")
    a(f"s_lshl_b32 s78, s78, 6")
    a(f"s_add_u32 s78, s78, {WS_PROF + kidx*256*8*64}")
    a(f"v_mov_b32 v250, s78")
    for i in range(nst):
        a(f"v_mov_b32 v251, s{80+2*i}")
        a(f"global_store_dword v250, v251, s[{wsp}:{wsp+1}] offset:{4*i}")
    a("s_waitcnt vmcnt(0)")

for x_ in range(80):
    assert (x_*205) >> 10 == x_//5
for x_ in range(768):
    assert (x_*6554) >> 16 == x_//10
for x_ in range(19):
    assert (x_*52) >> 8 == x_//5
for x_ in range(34):
    assert (x_*26) >> 8 == x_//10
for x_ in range(32):
    assert (x_*37) >> 8 == x_//7
```

```python
from gencommon import *
import gencommon as _gc
def stamp(a, i, wait=True):
    if opt('fused') and i not in (0, 2, 3): return
    _gc.stamp(a, i, wait)
def cstamp(a, i):
    if opt('fused'): return
    _gc.cstamp(a, i)

L_X   = 0
L_W   = 49152
L_MISC = 147456
L_WPHI = L_MISC
L_ZERO = L_MISC + 3200
L_CS   = L_MISC + 4096
L_CSW  = L_MISC + 8192
K1_LDS = 163840

S_X, S_W, S_PHI, S_WS = 8, 12, 16, 20
S_WAVE, S_R, S_C, S_RB, S_CT = 24, 25, 26, 27, 28
S_MI = 29
S_XOFF = 30
S_WOFF = 31
S_M0X, S_M0W = 35, 36
S_T0, S_T1, S_T2, S_T3, S_T4 = 37, 38, 39, 40, 41
S_KA = 44
S_PX, S_PWQKV, S_PWPHI, S_PWO, S_PW, S_PW2 = 44, 46, 48, 50, 54, 56
S_DBG, S_WSP = 60, 62

V_LANE = 1
V_HH, V_GRP, V_R4, V_CQ, V_S32 = 2, 3, 4, 5, 6
ACC = 64
F_W = [128, 148]; F_X = [144, 164]
XA = 180; WA = 184; WA2 = 188
VX = 200; VW = 202
VT = 204
V_MEAN, V_RSTD = 212, 213
V_FLAG = 214
SIDE_R = 16
SIDE_C = 40
def ST(): return opt('st', 'sc1')

class LQ:
    def __init__(self, a): self.a = a; self.q = []
    def issue(self, line, tag):
        self.a(line); self.q.append(tag)
        assert len(self.q) <= 15, self.q
    def need(self, *tags):
        last = -1
        for i, t in enumerate(self.q):
            if t in tags: last = i
        if last < 0: return
        n = len(self.q) - 1 - last
        self.a(f"s_waitcnt lgkmcnt({n})")
        self.q = self.q[last+1:]
    def drain(self):
        if self.q: self.a("s_waitcnt lgkmcnt(0)")
        self.q = []

def k1_decode(a):
    a("s_cmp_ge_u32 s2, 256")
    a("s_cbranch_scc1 K1_EXIT")
    a(f"s_load_dwordx16 s[{S_KA}:{S_KA+15}], s[0:1], 0")
    a(f"s_load_dwordx4 s[{S_DBG}:{S_DBG+3}], s[0:1], {KA_DBG}")
    stamp(a, 0, wait=False)
    a(f"v_and_b32 v{V_LANE}, 63, v0")
    a("v_lshrrev_b32 v7, 6, v0")
    a(f"s_and_b32 s{S_T0}, s2, 7")
    a(f"v_readfirstlane_b32 s{S_WAVE}, v7")
    a(f"s_lshr_b32 s{S_T1}, s2, 3")
    a(f"s_lshr_b32 s{S_T2}, s{S_T0}, 1")
    a(f"s_and_b32 s{S_T0}, s{S_T0}, 1")
    a(f"s_lshl_b32 s{S_T2}, s{S_T2}, 2")
    a(f"s_and_b32 s{S_R}, s{S_WAVE}, 3")
    a(f"s_lshr_b32 s{S_C}, s{S_WAVE}, 2")
    a(f"s_cmp_ge_u32 s{S_T1}, 28")
    a("s_cbranch_scc1 K1_DEC_HI")
    a(f"s_mul_i32 s{S_T3}, s{S_T1}, 37")
    a(f"s_lshr_b32 s{S_T3}, s{S_T3}, 8")
    a(f"s_add_u32 s{S_RB}, s{S_T2}, s{S_T3}")
    a(f"s_mul_i32 s{S_T3}, s{S_T3}, 7")
    a(f"s_sub_u32 s{S_T1}, s{S_T1}, s{S_T3}")
    a(f"s_lshl_b32 s{S_T0}, s{S_T0}, 2")
    a(f"s_add_u32 s{S_CT}, s{S_T0}, s{S_T1}")
    a(f"s_mov_b32 s{S_MI}, s{S_CT}")
    a(f"s_cmp_lt_u32 s{S_T1}, 4")
    a(f"s_cbranch_scc1 K1_ATT")
    a(f"s_sub_u32 s{S_CT}, s{S_CT}, 4")
    a(f"s_add_u32 s{S_MI}, s{S_CT}, 8")
    a("s_branch K1_FFN")
    a.label("K1_DEC_HI")
    a(f"s_lshl_b32 s{S_T0}, s{S_T0}, 1")
    a(f"s_add_u32 s{S_RB}, s{S_T2}, s{S_T0}")
    a(f"s_and_b32 s{S_T3}, s{S_T1}, 1")
    a(f"s_add_u32 s{S_RB}, s{S_RB}, s{S_T3}")
    a(f"s_mov_b32 s{S_CT}, 3")
    a(f"s_mov_b32 s{S_MI}, 11")
    a(f"s_cmp_lt_u32 s{S_T1}, 30")
    a("s_cbranch_scc1 K1_FFN")
    a(f"s_mov_b32 s{S_MI}, 15")
    a("s_branch K1_SPARE")

SIDE = 16
def side_addr(a):
    L = V_LANE
    a(f"s_sub_u32 s{S_T4}, s{S_MI}, 8")
    a(f"v_and_b32 v7, 7, v{L}")
    a(f"s_lshl_b32 s{S_T0}, s{S_WAVE}, 3")
    a(f"v_add_u32 v7, s{S_T0}, v7")
    a(f"v_lshrrev_b32 v8, 3, v{L}")
    a(f"v_mul_u32_u24 v15, 3456, v8")
    a(f"v_lshl_add_u32 v15, v7, 3, v15")
    a(f"s_lshl_b32 s{S_T0}, s{S_T4}, 9")
    a(f"v_add_u32 v15, s{S_T0}, v15")
    a(f"v_cmp_le_u32 vcc, 30, v7")
    a(f"v_cndmask_b32 v9, 0, 1, vcc")
    a(f"v_mul_u32_u24 v10, 30, v9")
    a(f"v_sub_u32 v10, v7, v10")
    a(f"v_mul_u32_u24 v11, 26, v10")
    a(f"v_lshrrev_b32 v11, 8, v11")
    a(f"v_mul_u32_u24 v14, 10, v11")
    a(f"v_sub_u32 v10, v10, v14")
    a(f"v_mul_u32_u24 v14, 1280, v11")
    a(f"v_lshl_add_u32 v14, v10, 3, v14")
    a(f"v_mul_u32_u24 v9, 80, v9")
    a(f"v_add_u32 v14, v14, v9")
    a(f"v_mul_u32_u24 v9, 3840, v8")
    a(f"v_add_u32 v14, v14, v9")
    a(f"s_mul_i32 s{S_T0}, s{S_T4}, 160")
    a(f"v_add_u32 v14, s{S_T0}, v14")
    a(f"v_mov_b32 v9, 0x40000000")
    a(f"v_cmp_gt_u32 vcc, 60, v7")
    a(f"v_cndmask_b32 v14, v9, v14, vcc")
    a(f"v_lshlrev_b32 v12, 4, v{L}")
    a(f"v_cmp_gt_u32 vcc, 16, v{L}")
    a(f"v_cndmask_b32 v13, v9, v12, vcc")

def side_loads(a, with_ffn_tile):
    a(f"s_lshl_b32 s{S_T0}, s{S_T4}, 4")
    a(f"s_lshl_b32 s{S_T1}, s{S_WAVE}, 1")
    a(f"s_add_u32 s{S_T0}, s{S_T0}, s{S_T1}")
    a(f"s_mul_i32 s{S_T0}, s{S_T0}, 1280")
    for rr in range(2):
        R = SIDE + 8*rr
        a(f"buffer_load_dwordx4 v[{R}:{R+3}], v12, s[{S_X}:{S_X+3}], s{S_T0} offen")
        a(f"buffer_load_dwordx4 v[{R+4}:{R+7}], v13, s[{S_X}:{S_X+3}], s{S_T0} offen offset:1024")
        if rr == 0: a(f"s_add_u32 s{S_T0}, s{S_T0}, 1280")
    for (srdn, stride, voff, base) in ((64, 3840, 14, SIDE + 16), (68, 3456, 15, SIDE + 26)):
        if srdn == 68 and not with_ffn_tile: continue
        a(f"s_mul_i32 s{S_T0}, s{S_RB}, {40*stride}")
        for i in range(5):
            a(f"buffer_load_dwordx2 v[{base+2*i}:{base+2*i+1}], v{voff}, s[{srdn}:{srdn+3}], s{S_T0} offen")
            if i < 4: a(f"s_add_u32 s{S_T0}, s{S_T0}, {8*stride}")

def wave_sum(a, v):
    for mod in ("quad_perm:[1,0,3,2]", "quad_perm:[2,3,0,1]", "row_half_mirror", "row_mirror"):
        a(f"v_add_f32_dpp v{v}, v{v}, v{v} {mod} row_mask:0xf bank_mask:0xf")
    for i, sg in enumerate((S_T0, S_T1, S_T2, S_T3)):
        a(f"v_readlane_b32 s{sg}, v{v}, {16*i}")
    a(f"v_mov_b32 v{v}, s{S_T0}")
    a(f"v_add_f32 v{v}, s{S_T1}, v{v}")
    a(f"v_add_f32 v{v}, s{S_T2}, v{v}")
    a(f"v_add_f32 v{v}, s{S_T3}, v{v}")

def stats_compute(a, R, U, rr):
    L = V_LANE
    for i in range(8):
        a(f"v_lshlrev_b32 v{U+2*i}, 16, v{R+i}")
        a(f"v_and_b32 v{U+2*i+1}, 0xffff0000, v{R+i}")
    a(f"v_add_f32 v9, v{U}, v{U+1}")
    a(f"v_add_f32 v10, v{U+2}, v{U+3}")
    for i in range(4, 16, 2):
        a(f"v_add_f32 v9, v9, v{U+i}")
        a(f"v_add_f32 v10, v10, v{U+i+1}")
    a(f"v_add_f32 v9, v9, v10")
    wave_sum(a, 9)
    a(f"v_mul_f32 v10, {hex(0x3acccccd)}, v9")
    for i in range(16): a(f"v_sub_f32 v{U+i}, v{U+i}, v10")
    a(f"v_mul_f32 v9, v{U}, v{U}")
    a(f"v_mul_f32 v8, v{U+1}, v{U+1}")
    for i in range(2, 8, 2):
        a(f"v_fma_f32 v9, v{U+i}, v{U+i}, v9")
        a(f"v_fma_f32 v8, v{U+i+1}, v{U+i+1}, v8")
    a(f"v_mul_f32 v11, v{U+8}, v{U+8}")
    for i in range(9, 16):
        a(f"v_fma_f32 v11, v{U+i}, v{U+i}, v11")
    a(f"v_cmp_gt_u32 vcc, 16, v{L}")
    a(f"v_cndmask_b32 v11, 0, v11, vcc")
    a(f"v_add_f32 v9, v9, v8")
    a(f"v_add_f32 v9, v9, v11")
    wave_sum(a, 9)
    a(f"v_mov_b32 v11, {hex(0x3727c5ac)}")
    a(f"v_fmac_f32 v11, {hex(0x3acccccd)}, v9")
    a(f"v_rsq_f32 v11, v11")
    a(f"s_lshl_b32 s{S_T0}, s{S_RB}, 7")
    a(f"s_lshl_b32 s{S_T1}, s{S_T4}, 4")
    a(f"s_add_u32 s{S_T0}, s{S_T0}, s{S_T1}")
    a(f"s_lshl_b32 s{S_T1}, s{S_WAVE}, 1")
    a(f"s_add_u32 s{S_T0}, s{S_T0}, s{S_T1}")
    a(f"s_add_u32 s{S_T0}, s{S_T0}, {rr}")
    a(f"s_lshl_b32 s{S_T0}, s{S_T0}, 3")
    a(f"v_mov_b32 v8, 0x40000000")
    a(f"v_cmp_eq_u32 vcc, 0, v{L}")
    a(f"v_cndmask_b32 v8, v8, 0, vcc")
    a(f"buffer_store_dwordx2 v[10:11], v8, s[{S_WS}:{S_WS+3}], s{S_T0} offen sc1")

def side_compute(a, with_ffn_tile):
    L = V_LANE
    tiles = [(SIDE + 16, 0)] + ([(SIDE + 26, 8)] if with_ffn_tile else [])
    for base, ctoff in tiles:
        A = 52
        for i in range(5):
            p0, p1 = base + 2*i, base + 2*i + 1
            t = A if i == 0 else 56
            a(f"v_lshlrev_b32 v{t}, 16, v{p0}"); a(f"v_and_b32 v{t+1}, 0xffff0000, v{p0}")
            a(f"v_lshlrev_b32 v{t+2}, 16, v{p1}"); a(f"v_and_b32 v{t+3}, 0xffff0000, v{p1}")
            if i:
                for e in range(4): a(f"v_add_f32 v{A+e}, v{A+e}, v{56+e}")
        for e in range(4): a(f"v_add_f32_dpp v{A+e}, v{A+e}, v{A+e} row_ror:8 row_mask:0xf bank_mask:0xf")
        for e in range(4): a(f"ds_swizzle_b32 v{56+e}, v{A+e} offset:0x401f")
        a("s_waitcnt lgkmcnt(0)")
        for e in range(4): a(f"v_add_f32 v{A+e}, v{A+e}, v{56+e}")
        for e in range(4): a(f"v_mov_b32 v{56+e}, v{A+e}")
        for e in range(4): a(f"v_permlane32_swap_b32 v{A+e}, v{56+e}")
        for e in range(4): a(f"v_add_f32 v{A+e}, v{A+e}, v{56+e}")
        a(f"s_add_u32 s{S_T0}, s{S_T4}, {ctoff}")
        a(f"s_lshl_b32 s{S_T0}, s{S_T0}, 4")
        a(f"s_add_u32 s{S_T0}, s{S_T0}, s{S_RB}")
        a(f"s_lshl_b32 s{S_T0}, s{S_T0}, 10")
        a(f"s_lshl_b32 s{S_T1}, s{S_WAVE}, 7")
        a(f"s_add_u32 s{S_T0}, s{S_T0}, s{S_T1}")
        a(f"s_add_u32 s{S_T0}, s{S_T0}, {WS_CSP}")
        a(f"v_lshlrev_b32 v7, 4, v{L}")
        a(f"v_mov_b32 v8, 0x40000000")
        a(f"v_cmp_gt_u32 vcc, 8, v{L}")
        a(f"v_cndmask_b32 v7, v8, v7, vcc")
        a(f"buffer_store_dwordx4 v[{A}:{A+3}], v7, s[{S_WS}:{S_WS+3}], s{S_T0} offen sc1")
    stats_compute(a, SIDE, 64, 0)
    stats_compute(a, SIDE + 8, 64, 1)
    if opt('fused'):
        a(f"s_cmp_lg_u32 s{S_WAVE}, 0")
        a(f"s_cbranch_scc1 K1_NOZ_{int(with_ffn_tile)}")
        a(f"v_mov_b32 v9, 0")
        a(f"s_cmp_lg_u32 s{S_RB}, 0")
        a(f"s_cbranch_scc1 K1_NOZK_{int(with_ffn_tile)}")
        a(f"s_lshl_b32 s{S_T0}, s{S_T4}, 7")
        a(f"s_add_u32 s{S_T0}, s{S_T0}, {WS_CNT + 2048}")
        a(f"v_mov_b32 v8, s{S_T0}")
        a(f"global_store_dword v8, v9, s[{S_WSP}:{S_WSP+1}] sc1")
        a.label(f"K1_NOZK_{int(with_ffn_tile)}")
        if not with_ffn_tile:
            a(f"s_lshl_b32 s{S_T0}, s{S_RB}, 7")
            a(f"s_add_u32 s{S_T0}, s{S_T0}, {WS_CNT}")
            a(f"v_mov_b32 v8, s{S_T0}")
            a(f"global_store_dword v8, v9, s[{S_WSP}:{S_WSP+1}] sc1")
            a(f"s_lshr_b32 s{S_T0}, s{S_RB}, 1")
            a(f"s_lshl_b32 s{S_T0}, s{S_T0}, 7")
            a(f"s_add_u32 s{S_T0}, s{S_T0}, {WS_CNT + 3072}")
            a(f"v_mov_b32 v8, s{S_T0}")
            a(f"global_store_dword v8, v9, s[{S_WSP}:{S_WSP+1}] sc1")
        a.label(f"K1_NOZ_{int(with_ffn_tile)}")

def side_publish(a, with_ffn_tile, tag):
    a(f"s_cmp_lg_u32 s{S_WAVE}, 0")
    a(f"s_cbranch_scc1 K1_NOPUB_{tag}")
    a(f"s_lshl_b32 s{S_T0}, s{S_RB}, 2")
    one_lane_atomic(a, S_T0)
    a(f"s_sub_u32 s{S_T0}, s{S_MI}, 8")
    a(f"s_lshl_b32 s{S_T0}, s{S_T0}, 2")
    a(f"s_add_u32 s{S_T0}, s{S_T0}, 64")
    one_lane_atomic(a, S_T0)
    if with_ffn_tile:
        a(f"s_add_u32 s{S_T0}, s{S_T0}, 32")
        one_lane_atomic(a, S_T0)
    a.label(f"K1_NOPUB_{tag}")

def k1_prologue(a, role):
    att = role == 'A'
    L = V_LANE
    a(f"v_lshrrev_b32 v7, 3, v{L}")
    a(f"s_lshl_b32 s{S_T0}, s{S_WAVE}, 4")
    a(f"v_add_u32 v7, s{S_T0}, v7")
    a(f"v_mul_u32_u24 v7, 1280, v7")
    a(f"v_lshrrev_b32 v8, 4, v{L}")
    a(f"v_xor_b32 v8, v8, v{L}")
    a(f"v_and_b32 v8, 7, v8")
    a(f"v_lshl_add_u32 v{VX}, v8, 4, v7")
    a(f"v_xor_b32 v8, 4, v8")
    a(f"v_lshl_add_u32 v{VX+1}, v8, 4, v7")
    a(f"v_add_u32 v{VX+1}, {8*1280}, v{VX+1}")
    a(f"s_mov_b32 s{S_XOFF}, 0")
    a(f"s_lshl_b32 s{S_M0X}, s{S_WAVE}, 11")
    if att:
        a(f"v_cmp_le_u32 vcc, 30, v{L}")
        a(f"v_cndmask_b32 v7, 0, 1, vcc")
        a(f"v_mul_u32_u24 v8, 30, v7")
        a(f"v_sub_u32 v8, v{L}, v8")
        a(f"v_cmp_le_u32 vcc, 15, v8")
        a(f"v_cndmask_b32 v9, 0, 1, vcc")
        a(f"v_mul_u32_u24 v10, 15, v9")
        a(f"v_sub_u32 v8, v8, v10")
        a(f"v_mul_u32_u24 v10, 52, v8")
        a(f"v_lshrrev_b32 v10, 8, v10")
        a(f"v_mul_u32_u24 v11, 5, v10")
        a(f"v_sub_u32 v8, v8, v11")
        a(f"v_mul_u32_u24 v7, {4*3840}, v7")
        a(f"v_mul_u32_u24 v10, 1280, v10")
        a(f"v_add_u32 v7, v7, v10")
        a(f"v_mul_u32_u24 v9, 80, v9")
        a(f"v_add_u32 v7, v7, v9")
        a(f"v_lshl_add_u32 v7, v8, 4, v7")
        a(f"s_mul_i32 s{S_T0}, s{S_WAVE}, {8*3840}")
        a(f"s_mul_i32 s{S_T1}, s{S_CT}, 160")
        a(f"s_add_u32 s{S_T0}, s{S_T0}, s{S_T1}")
        a(f"v_add_u32 v{VW}, s{S_T0}, v7")
        for q in range(4): a(f"s_mov_b32 s{S_WOFF+q}, {q*3840}")
        a(f"s_mul_i32 s{S_M0W}, s{S_WAVE}, 3840")
        a(f"s_add_u32 s{S_M0W}, s{S_M0W}, {L_W}")
    else:
        a(f"v_lshrrev_b32 v7, 5, v{L}")
        a(f"v_and_b32 v8, 31, v{L}")
        a(f"v_lshlrev_b32 v9, 2, v7")
        a(f"v_xor_b32 v8, v8, v9")
        a(f"v_mul_u32_u24 v7, 3456, v7")
        a(f"s_mul_i32 s{S_T0}, s{S_WAVE}, {8*3456}")
        a(f"s_lshl_b32 s{S_T1}, s{S_CT}, 9")
        a(f"s_add_u32 s{S_T0}, s{S_T0}, s{S_T1}")
        a(f"v_add_u32 v7, s{S_T0}, v7")
        a(f"v_lshl_add_u32 v{VW}, v8, 4, v7")
        a(f"v_xor_b32 v8, 8, v8")
        a(f"v_lshl_add_u32 v{VW+1}, v8, 4, v7")
        for q in range(4): a(f"s_mov_b32 s{S_WOFF+q}, {q*2*3456}")
        a(f"s_lshl_b32 s{S_M0W}, s{S_WAVE}, 12")
        a(f"s_add_u32 s{S_M0W}, s{S_M0W}, {L_W}")
        side_addr(a)
    a(f"v_lshlrev_b32 v{VT}, 4, v{L}")
    a("s_waitcnt lgkmcnt(0)")
    a(f"s_mul_i32 s{S_T0}, s{S_RB}, {128*1280}")
    srd_off(a, S_X, S_PX, S_PX+1, S_T0, 128*1280)
    if att: srd(a, S_W, S_PWQKV, S_PWQKV+1, 640*3840)
    else:
        srd(a, S_W, S_PW, S_PW+1, 640*3456)
        srd(a, 64, S_PWQKV, S_PWQKV+1, 640*3840)
        srd(a, 68, S_PW, S_PW+1, 640*3456)
        side_loads(a, True)
    for grp in k1_dma(role, 0):
        for ln in grp: a(ln)
    if att:
        a(f"s_mul_i32 s{S_T0}, s{S_CT}, 3200")
        srd_off(a, S_PHI, S_PWPHI, S_PWPHI+1, S_T0, 3200)
        a(f"s_lshl_b32 s{S_T0}, s{S_WAVE}, 10")
        a(f"s_add_u32 m0, s{S_T0}, {L_MISC}")
        a("s_nop 0")
        a(f"buffer_load_dwordx4 v{VT}, s[{S_PHI}:{S_PHI+3}], s{S_T0} offen lds")
    for n in (1, 2):
        for grp in k1_dma(role, n):
            for ln in grp: a(ln)
    srd(a, S_WS, S_WSP, S_WSP+1, WS_END)

def k1_dma(role, n):
    att = role == 'A'
    s = n % 3
    g = []
    for q in range(2):
        g.append([f"s_add_u32 m0, s{S_M0X}, {L_X + s*16384 + q*1024}",
                  "s_nop 0",
                  f"buffer_load_dwordx4 v{VX+q}, s[{S_X}:{S_X+3}], s{S_XOFF} offen lds"])
    g[-1].append(f"s_add_u32 s{S_XOFF}, s{S_XOFF}, 128")
    for q in range(4):
        if att:
            g.append([f"s_add_u32 m0, s{S_M0W}, {s*32768 + q*960}",
                      "s_mov_b32 exec_hi, 0x0fffffff",
                      f"buffer_load_dwordx4 v{VW}, s[{S_W}:{S_W+3}], s{S_WOFF+q} offen lds",
                      "s_mov_b32 exec_hi, -1",
                      f"s_add_u32 s{S_WOFF+q}, s{S_WOFF+q}, {64*3840}"])
        else:
            g.append([f"s_add_u32 m0, s{S_M0W}, {s*32768 + q*1024}",
                      "s_nop 0",
                      f"buffer_load_dwordx4 v{VW + q%2}, s[{S_W}:{S_W+3}], s{S_WOFF+q} offen lds",
                      f"s_add_u32 s{S_WOFF+q}, s{S_WOFF+q}, {64*3456}"])
    return g

def k1_addr_setup(a, role):
    att = role == 'A'
    L = V_LANE
    a(f"v_lshrrev_b32 v{V_HH}, 5, v{L}")
    a(f"v_bfe_u32 v{V_GRP}, v{L}, 4, 1")
    a(f"v_bfe_u32 v{V_R4}, v{L}, 2, 2")
    a(f"v_and_b32 v{V_CQ}, 3, v{L}")
    a(f"v_and_b32 v{V_S32}, 31, v{L}")
    a(f"s_lshl_b32 s{S_T0}, s{S_R}, 12")
    a(f"v_lshlrev_b32 v7, 7, v{V_S32}")
    a(f"v_add_u32 v7, s{S_T0}, v7")
    a(f"v_bfe_u32 v8, v{V_S32}, 1, 3")
    a(f"v_xor_b32 v8, v8, v{V_HH}")
    a(f"v_lshl_add_u32 v{XA}, v8, 4, v7")
    for u in range(1, 4):
        a(f"v_xor_b32 v{XA+u}, {u*32}, v{XA}")
    if att:
        a(f"v_and_b32 v7, 1, v{V_CQ}")
        a(f"v_lshrrev_b32 v8, 1, v{V_CQ}")
        a(f"v_lshl_add_u32 v8, v{V_GRP}, 1, v8")
        a(f"v_lshlrev_b32 v9, 3, v{V_HH}")
        a(f"v_lshl_add_u32 v9, v{V_R4}, 1, v9")
        a(f"v_mul_u32_u24 v9, 480, v9")
        a(f"s_mul_i32 s{S_T0}, s{S_C}, 240")
        a(f"s_add_u32 s{S_T0}, s{S_T0}, {L_W}")
        a(f"v_add_u32 v9, s{S_T0}, v9")
        a(f"v_lshl_add_u32 v10, v7, 2, v8")
        a(f"v_add_u32 v10, 1, v10")
        a(f"v_lshl_add_u32 v{WA}, v10, 3, v9")
        a(f"v_mul_u32_u24 v10, 10, v8")
        a(f"v_mul_u32_u24 v11, 9, v7")
        a(f"v_add_u32 v10, v10, v11")
        a(f"v_add_u32 v11, 6, v7")
        a(f"v_cmp_eq_u32 vcc, 3, v8")
        a(f"v_cndmask_b32 v10, v10, v11, vcc")
        a(f"v_lshl_add_u32 v{WA+3}, v10, 3, v9")
        a(f"v_add_u32 v{WA2}, 0x10000, v{WA}")
        a(f"v_add_u32 v{WA2+3}, 0x10000, v{WA+3}")
    else:
        a(f"v_and_b32 v7, 1, v{V_CQ}")
        a(f"v_lshl_add_u32 v7, v{V_GRP}, 1, v7")
        a(f"v_lshrrev_b32 v8, 1, v{V_CQ}")
        a(f"v_lshl_add_u32 v9, v{V_HH}, 3, v{V_R4}")
        a(f"v_lshlrev_b32 v9, 9, v9")
        a(f"v_lshl_add_u32 v9, v8, 3, v9")
        a(f"v_add_u32 v9, {L_W}, v9")
        a(f"s_lshl_b32 s{S_T0}, s{S_C}, 4")
        a(f"v_add_u32 v7, s{S_T0}, v7")
        a(f"v_lshlrev_b32 v10, 2, v{V_R4}")
        for T in range(4):
            a(f"v_add_u32 v11, {4*T}, v7")
            a(f"v_xor_b32 v11, v11, v10")
            a(f"v_lshl_add_u32 v{WA+T}, v11, 4, v9")
            a(f"v_add_u32 v{WA2+T}, 0x10000, v{WA+T}")

def k1_reads(role, n, u, b):
    att = role == 'A'
    s = n % 3
    r = {}
    r['X'] = [f"ds_read_b128 v[{F_X[b]}:{F_X[b]+3}], v{XA+u} offset:{L_X + s*16384}"]
    for T in range(4):
        r[f'W{T}'] = []
        for rd in range(2):
            if att: off = u*16*480 + rd*480 + (80*T if T < 3 else 0)
            else:   off = u*16*512 + rd*4*512
            idx = T if (not att) else (3 if T == 3 else 0)
            if s == 2: reg, imm = WA2 + idx, off
            else: reg, imm = WA + idx, off + s*32768
            d = F_W[b] + 4*T + 2*rd
            r[f'W{T}'].append(f"ds_read_b64_tr_b16 v[{d}:{d+1}], v{reg} offset:{imm}")
    return r

def one_lane_atomic(a, off_s, base=None):
    if base is None: base = S_DBG
    a(f"v_mov_b32 v8, s{off_s}")
    a(f"v_mov_b32 v9, 1")
    a("s_mov_b64 exec, 1")
    a(f"global_atomic_add v8, v9, s[{base}:{base+1}] sc1")
    a("s_mov_b64 exec, -1")

def k1_mainloop(a, role):
    tag = role
    L = V_LANE
    att = role == 'A'
    k1_addr_setup(a, role)
    if att:
        stamp(a, 1)
        a("s_waitcnt vmcnt(12)")
    else:
        a("s_waitcnt vmcnt(18)")
        side_compute(a, True)
        stamp(a, 1)
        a("s_waitcnt vmcnt(0)")
    a("s_barrier")
    if not att: side_publish(a, True, tag)
    stamp(a, 2)
    cstamp(a, 8)
    lq = LQ(a)
    r0 = k1_reads(role, 0, 0, 0)
    for t in ('X', 'W0', 'W1', 'W2', 'W3'):
        for ln in r0[t]: lq.issue(ln, (0, t))
    seq = [(n, u) for n in range(10) for u in range(4)]
    pending = []
    for idx, (n, u) in enumerate(seq):
        b = idx % 2
        nxt = seq[idx+1] if idx + 1 < len(seq) else None
        if u == 3 and nxt is not None:
            n1 = n + 1
            assert not pending
            lq.drain()
            if n1 == 1: a("s_waitcnt vmcnt(6)")
            elif n1 <= 8: a("s_waitcnt vmcnt(6)")
            else: a("s_waitcnt vmcnt(0)")
            if n1 == 8:
                a(f"s_cmp_lg_u32 s{S_WAVE}, 0")
                a(f"s_cbranch_scc1 K1_FLAGOK_{tag}")
                a.label(f"K1_FLAGCHK_{tag}")
                a(f"v_readfirstlane_b32 s{S_T0}, v{V_FLAG}")
                a(f"v_readfirstlane_b32 s{S_T1}, v{V_FLAG+1}")
                a(f"s_add_u32 s{S_T0}, s{S_T0}, s{S_T1}")
                a(f"s_cmp_eq_u32 s{S_T0}, 24")
                a(f"s_cbranch_scc1 K1_FLAGOK_{tag}")
                a("s_sleep 8")
                a(f"global_load_dword v{V_FLAG}, v10, s[{S_DBG}:{S_DBG+1}] sc1")
                a(f"global_load_dword v{V_FLAG+1}, v11, s[{S_DBG}:{S_DBG+1}] sc1")
                a("s_waitcnt vmcnt(0)")
                a(f"s_branch K1_FLAGCHK_{tag}")
                a.label(f"K1_FLAGOK_{tag}")
            a("s_barrier")
            if n1 == 7:
                a(f"s_lshl_b32 s{S_T0}, s{S_RB}, 2")
                a(f"v_mov_b32 v10, s{S_T0}")
                a(f"s_lshl_b32 s{S_T0}, s{S_MI}, 2")
                a(f"s_add_u32 s{S_T0}, s{S_T0}, 64")
                a(f"v_mov_b32 v11, s{S_T0}")
                a(f"global_load_dword v{V_FLAG}, v10, s[{S_DBG}:{S_DBG+1}] sc1")
                a(f"global_load_dword v{V_FLAG+1}, v11, s[{S_DBG}:{S_DBG+1}] sc1")
            if n1 == 8:
                a(f"s_lshl_b32 s{S_T0}, s{S_RB}, 7")
                a(f"s_lshl_b32 s{S_T1}, s{S_R}, 5")
                a(f"s_add_u32 s{S_T0}, s{S_T0}, s{S_T1}")
                a(f"v_add_u32 v7, s{S_T0}, v{V_S32}")
                a(f"v_lshlrev_b32 v7, 3, v7")
                a(f"global_load_dwordx2 v[{V_MEAN}:{V_RSTD}], v7, s[{S_WSP}:{S_WSP+1}] sc1")
                a(f"s_cmp_lg_u32 s{S_WAVE}, 7")
                a(f"s_cbranch_scc1 K1_NOCSL_{tag}")
                a(f"v_lshlrev_b32 v7, 4, v{L}")
                a(f"s_lshl_b32 s{S_T0}, s{S_MI}, 14")
                a(f"s_add_u32 s{S_T0}, s{S_T0}, {WS_CSP}")
                for i in range(16):
                    reg = 216 + 4*i if i < 10 else 16 + 4*(i - 10)
                    a(f"buffer_load_dwordx4 v[{reg}:{reg+3}], v7, s[{S_WS}:{S_WS+3}], s{S_T0} offen sc1")
                    if i < 15: a(f"s_add_u32 s{S_T0}, s{S_T0}, 1024")
                a.label(f"K1_NOCSL_{tag}")
            if n1 == 9:
                a(f"s_cmp_lg_u32 s{S_WAVE}, 7")
                a(f"s_cbranch_scc1 K1_NOCSS_{tag}")
                for i in range(1, 16):
                    reg = 216 + 4*i if i < 10 else 16 + 4*(i - 10)
                    for e in range(4): a(f"v_add_f32 v{216+e}, v{216+e}, v{reg+e}")
                a(f"v_lshlrev_b32 v7, 4, v{L}")
                a(f"v_add_u32 v7, {L_CS}, v7")
                a(f"ds_write_b128 v7, v[216:219]")
                a("s_waitcnt lgkmcnt(0)")
                a.label(f"K1_NOCSS_{tag}")
            if n + 3 <= 9 and opt('dma', 'spread') != 'none': pending = k1_dma(role, n + 3)
        cnt = {3: 2, 0: 2, 1: 1, 2: 1}[u]
        dma = pending[:cnt]; pending = pending[cnt:]
        reads = k1_reads(role, nxt[0], nxt[1], 1 - b) if nxt else None
        def mf(T):
            d = ACC + 16*T
            c = "0" if idx == 0 else f"v[{d}:{d+15}]"
            a(f"v_mfma_f32_32x32x16_bf16 v[{d}:{d+15}], v[{F_W[b]+4*T}:{F_W[b]+4*T+3}], v[{F_X[b]}:{F_X[b]+3}], {c}")
        def rd(t):
            if reads is None: return
            for ln in reads[t]: lq.issue(ln, (idx + 1, t))
        front = (u == 2)
        lq.need((idx, 'X'), (idx, 'W0'))
        mf(0)
        rd('X'); rd('W0')
        if front: rd('W1')
        for g in dma[:1]:
            for ln in g: a(ln)
        lq.need((idx, 'W1'))
        mf(1)
        if front: rd('W2');
        else: rd('W1')
        lq.need((idx, 'W2'))
        mf(2)
        if front: rd('W3')
        else: rd('W2')
        for g in dma[1:]:
            for ln in g: a(ln)
        lq.need((idx, 'W3'))
        mf(3)
        if not front: rd('W3')
    lq.drain()

def k1_correction(a, role):
    att = role == 'A'
    L = V_LANE
    a("s_barrier")
    m = V_S32
    a(f"v_lshrrev_b32 v7, 2, v{m}")
    a(f"v_and_b32 v8, 3, v{m}")
    if att:
        a(f"v_and_b32 v9, 1, v7")
        a(f"v_lshrrev_b32 v10, 1, v7")
        a(f"v_lshl_add_u32 v11, v9, 2, v10")
        a(f"v_add_u32 v11, 1, v11")
        a(f"v_mul_u32_u24 v12, 10, v10")
        a(f"v_mul_u32_u24 v13, 9, v9")
        a(f"v_add_u32 v12, v12, v13")
        a(f"v_add_u32 v13, 6, v9")
        a(f"v_cmp_eq_u32 vcc, 3, v10")
        a(f"v_cndmask_b32 v12, v12, v13, vcc")
        a(f"s_mul_i32 s{S_T0}, s{S_C}, 30")
        a(f"v_add_u32 v11, s{S_T0}, v11")
        a(f"v_add_u32 v12, s{S_T0}, v12")
        a(f"v_lshl_add_u32 v11, v11, 2, v8")
        a(f"v_lshl_add_u32 v12, v12, 2, v8")
        a(f"v_lshlrev_b32 v11, 2, v11")
        a(f"v_lshlrev_b32 v12, 2, v12")
        a(f"v_add_u32 v11, {L_CS}, v11")
        a(f"v_add_u32 v12, {L_CS}, v12")
        for T in range(3):
            a(f"ds_read_b32 v{VT+T}, v11 offset:{160*T}")
        a(f"ds_read_b32 v{VT+3}, v12")
    else:
        a(f"v_lshrrev_b32 v9, 2, v7")
        a(f"v_and_b32 v10, 1, v7")
        a(f"v_lshl_add_u32 v9, v9, 1, v10")
        a(f"v_bfe_u32 v10, v7, 1, 1")
        a(f"v_lshl_add_u32 v9, v9, 1, v10")
        a(f"s_lshl_b32 s{S_T0}, s{S_C}, 5")
        a(f"v_add_u32 v9, s{S_T0}, v9")
        a(f"v_lshl_add_u32 v9, v9, 2, v8")
        a(f"v_lshlrev_b32 v9, 2, v9")
        a(f"v_add_u32 v9, {L_CS}, v9")
        for T in range(4):
            a(f"ds_read_b32 v{VT+T}, v9 offset:{128*T}")
    B = 140
    a(f"v_sub_f32 v14, 0, v{V_MEAN}")
    a(f"v_cvt_pk_bf16_f32 v15, v14, v14")
    a(f"v_lshlrev_b32 v13, 16, v15")
    a(f"v_sub_f32 v13, v14, v13")
    a(f"v_cvt_pk_bf16_f32 v{B}, v14, v13")
    a(f"v_and_b32 v{B+1}, 0xffff, v15")
    a(f"v_mov_b32 v{B+2}, 0")
    a(f"v_mov_b32 v{B+3}, 0")
    a(f"v_cmp_gt_u32 vcc, 32, v{L}")
    a(f"v_mov_b32 v15, 0")
    a("s_waitcnt lgkmcnt(0)")
    for T in range(4):
        A = 128 + 4*T if T < 3 else 144
        a(f"v_cndmask_b32 v{VT+T}, 0, v{VT+T}, vcc")
        a(f"v_cvt_pk_bf16_f32 v{A}, v{VT+T}, v{VT+T}")
        a(f"v_lshlrev_b32 v14, 16, v{A}")
        a(f"v_sub_f32 v14, v{VT+T}, v14")
        a(f"v_cvt_pk_bf16_f32 v{A+1}, v14, v15")
        a(f"v_mov_b32 v{A+2}, 0")
        a(f"v_mov_b32 v{A+3}, 0")
    for T in range(4):
        A = 128 + 4*T if T < 3 else 144
        d = ACC + 16*T
        a(f"v_mfma_f32_32x32x16_bf16 v[{d}:{d+15}], v[{A}:{A+3}], v[{B}:{B+3}], v[{d}:{d+15}]")

def softmax_unit(a, C0, C1, P, EN, T, V_LP):
    x = [C0 + i for i in range(16)] + [C1 + i for i in range(4)]
    mx, mn, nmx, pmn, sp, sn = T, T+1, T+2, T+3, T+4, T+5
    a(f"v_max3_f32 v{mx}, v{x[0]}, v{x[1]}, v{x[2]}")
    a(f"v_min3_f32 v{mn}, v{x[0]}, v{x[1]}, v{x[2]}")
    for i in range(3, 19, 2):
        a(f"v_max3_f32 v{mx}, v{mx}, v{x[i]}, v{x[i+1]}")
        a(f"v_min3_f32 v{mn}, v{mn}, v{x[i]}, v{x[i+1]}")
    a(f"v_max_f32 v{mx}, v{mx}, v{x[19]}")
    a(f"v_min_f32 v{mn}, v{mn}, v{x[19]}")
    a(f"v_mul_f32 v{nmx}, v{mx}, v{V_LP}")
    a(f"v_mul_f32 v{pmn}, v{mn}, v{V_LP}")
    for i in range(20):
        a(f"v_fma_f32 v{EN+i}, -v{x[i]}, v{V_LP}, v{pmn}")
        a(f"v_fma_f32 v{x[i]}, v{x[i]}, v{V_LP}, -v{nmx}")
    for i in range(20):
        a(f"v_exp_f32 v{EN+i}, v{EN+i}")
        a(f"v_exp_f32 v{x[i]}, v{x[i]}")
    a(f"v_add_f32 v{sp}, v{x[0]}, v{x[1]}")
    a(f"v_add_f32 v{sn}, v{EN}, v{EN+1}")
    a(f"v_add_f32 v{T+6}, v{x[2]}, v{x[3]}")
    a(f"v_add_f32 v{T+7}, v{EN+2}, v{EN+3}")
    for i in range(4, 20, 2):
        a(f"v_add_f32 v{sp}, v{sp}, v{x[i]}")
        a(f"v_add_f32 v{sn}, v{sn}, v{EN+i}")
        a(f"v_add_f32 v{T+6}, v{T+6}, v{x[i+1]}")
        a(f"v_add_f32 v{T+7}, v{T+7}, v{EN+i+1}")
    a(f"v_add_f32 v{sp}, v{sp}, v{T+6}")
    a(f"v_add_f32 v{sn}, v{sn}, v{T+7}")
    a(f"v_rcp_f32 v{sp}, v{sp}")
    a(f"v_rcp_f32 v{sn}, v{sn}")
    for i in range(20):
        a(f"v_mul_f32 v{x[i]}, v{x[i]}, v{sp}")
        a(f"v_mul_f32 v{EN+i}, v{EN+i}, v{sn}")
    for i in range(10):
        a(f"v_cvt_pk_bf16_f32 v{P+i}, v{x[2*i]}, v{x[2*i+1]}")
    for i in range(10):
        a(f"v_cvt_pk_bf16_f32 v{P+10+i}, v{EN+2*i}, v{EN+2*i+1}")

def k1_att_epilogue(a):
    L = V_LANE
    APHI, QP, KP, VP = 128, 152, 164, 176
    PQ0, PQ1, PK0, PK1 = 192, 208, 224, 240
    V_LP = 8
    a(f"v_and_b32 v9, 1, v{V_CQ}")
    a(f"v_lshrrev_b32 v10, 1, v{V_CQ}")
    a(f"v_lshl_add_u32 v10, v{V_GRP}, 1, v10")
    a(f"s_lshl_b32 s{S_T0}, s{S_C}, 1")
    a(f"v_add_u32 v11, s{S_T0}, v{V_HH}")
    a(f"v_mul_u32_u24 v11, 800, v11")
    a(f"v_mul_u32_u24 v12, 40, v{V_R4}")
    a(f"v_add_u32 v11, v11, v12")
    a(f"v_lshl_add_u32 v11, v10, 3, v11")
    a(f"v_add_u32 v11, {L_WPHI}, v11")
    a(f"v_cmp_eq_u32 vcc, 0, v{V_HH}")
    a(f"v_mov_b32 v12, 160")
    a(f"v_cndmask_b32 v13, 0, v12, vcc")
    a(f"v_add_u32 v13, v11, v13")
    a(f"v_mov_b32 v12, 640")
    a(f"v_cndmask_b32 v14, v12, 0, vcc")
    a(f"v_add_u32 v14, v11, v14")
    a(f"v_cmp_eq_u32 vcc, v9, v{V_HH}")
    a(f"v_mov_b32 v12, {L_ZERO}")
    a(f"v_cndmask_b32 v13, v12, v13, vcc")
    a(f"v_cndmask_b32 v14, v12, v14, vcc")
    a(f"v_mul_f32 v{V_LP}, {hex(LOG2E_BITS)}, v{V_RSTD}")
    a.nop(8)
    for U in range(2):
        for t in range(3):
            d = APHI + 4*(3*U + t)
            if t < 2:
                for rd in range(2):
                    a(f"ds_read_b64_tr_b16 v[{d+2*rd}:{d+2*rd+1}], v13 offset:{(8*t + 4*rd)*40 + 32*U}")
            else:
                a(f"ds_read_b64_tr_b16 v[{d}:{d+1}], v14 offset:{32*U}")
                a(f"v_mov_b32 v{d+2}, 0")
                a(f"v_mov_b32 v{d+3}, 0")
    def src(part, i):
        return ACC + 16*part + i if i < 16 else ACC + 48 + 4*part + (i - 16)
    for i in range(10):
        a(f"v_cvt_pk_bf16_f32 v{QP+i}, v{src(0,2*i)}, v{src(0,2*i+1)}")
    for i in range(10):
        a(f"v_cvt_pk_bf16_f32 v{KP+i}, v{src(1,2*i)}, v{src(1,2*i+1)}")
    for r_ in (QP+10, QP+11, KP+10, KP+11): a(f"v_mov_b32 v{r_}, 0")
    for i in range(20):
        a(f"v_mul_f32 v{src(2,i)}, v{src(2,i)}, v{V_RSTD}")
    for i in range(10):
        a(f"v_cvt_pk_bf16_f32 v{VP+i}, v{src(2,2*i)}, v{src(2,2*i+1)}")
    a(f"v_mov_b32 v{VP+10}, 0x3f80")
    a(f"v_mov_b32 v{VP+11}, 0")
    a("s_waitcnt lgkmcnt(0)")
    for (X, C0, C1) in ((QP, PQ0, PQ1), (KP, PK0, PK1)):
        for U, C in ((0, C0), (1, C1)):
            for t in range(3):
                A = APHI + 4*(3*U + t)
                c = "0" if t == 0 else f"v[{C}:{C+15}]"
                a(f"v_mfma_f32_32x32x16_bf16 v[{C}:{C+15}], v[{A}:{A+3}], v[{X+4*t}:{X+4*t+3}], {c}")
    EN, P, T = 64, 84, 104
    softmax_unit(a, PQ0, PQ1, P, EN, T, V_LP)
    a(f"s_lshl_b32 s{S_T0}, s{S_CT}, 2")
    a(f"s_lshl_b32 s{S_T1}, s{S_C}, 1")
    a(f"s_add_u32 s{S_T0}, s{S_T0}, s{S_T1}")
    a(f"v_add_u32 v9, s{S_T0}, v{V_HH}")
    a(f"s_mov_b32 s{S_T2}, {PQ_HEAD}")
    a(f"v_mul_lo_u32 v9, v9, s{S_T2}")
    a(f"v_lshl_add_u32 v9, v{V_S32}, 4, v9")
    a(f"s_lshl_b32 s{S_T0}, s{S_RB}, 2")
    a(f"s_add_u32 s{S_T0}, s{S_T0}, s{S_R}")
    a(f"s_mul_i32 s{S_T0}, s{S_T0}, 2560")
    a(f"s_add_u32 s{S_T0}, s{S_T0}, {WS_PQ}")
    for o in range(5):
        a(f"buffer_store_dwordx4 v[{P+4*o}:{P+4*o+3}], v9, s[{S_WS}:{S_WS+3}], s{S_T0} offen offset:{o*512} {ST()}")
    stamp(a, 5)
    P2 = 112 + 16
    softmax_unit(a, PK0, PK1, 128, EN, T, V_LP)
    a(f"s_lshl_b32 s{S_T0}, s{S_C}, 1")
    a(f"v_add_u32 v9, s{S_T0}, v{V_HH}")
    a(f"v_lshlrev_b32 v9, 14, v9")
    a(f"s_lshl_b32 s{S_T0}, s{S_R}, 12")
    a(f"v_add_u32 v9, s{S_T0}, v9")
    a(f"v_lshl_add_u32 v9, v{V_S32}, 7, v9")
    a(f"v_bfe_u32 v10, v{V_S32}, 1, 1")
    a(f"v_lshlrev_b32 v10, 2, v10")
    a(f"v_bfe_u32 v11, v{V_S32}, 2, 1")
    a(f"v_lshl_or_b32 v10, v11, 1, v10")
    a(f"v_and_b32 v11, 1, v{V_S32}")
    a(f"v_or_b32 v10, v10, v11")
    a(f"v_lshl_add_u32 v9, v10, 4, v9")
    for gam in range(8):
        srcreg = 128 + 4*gam if gam < 5 else VP + 4*(gam - 5)
        a(f"v_xor_b32 v{10 + gam%2}, {gam*16}, v9")
        a(f"ds_write_b128 v{10 + gam%2}, v[{srcreg}:{srcreg+3}]")
    a("s_waitcnt lgkmcnt(0)")
    a("s_barrier")
    stamp(a, 6)
    a(f"s_lshr_b32 s{S_T0}, s{S_WAVE}, 1")
    a(f"s_and_b32 s{S_T1}, s{S_WAVE}, 1")
    a(f"v_lshl_add_u32 v9, v{V_HH}, 3, v{V_R4}")
    a(f"v_lshlrev_b32 v9, 7, v9")
    a(f"s_lshl_b32 s{S_T2}, s{S_T0}, 14")
    a(f"v_add_u32 v9, s{S_T2}, v9")
    a(f"v_and_b32 v10, 1, v{V_CQ}")
    a(f"v_lshl_add_u32 v9, v10, 3, v9")
    a(f"v_lshrrev_b32 v10, 1, v{V_CQ}")
    a(f"v_lshl_add_u32 v10, v{V_GRP}, 1, v10")
    a(f"v_add_u32 v10, 4, v10")
    a(f"v_bfe_u32 v11, v{V_R4}, 1, 1")
    a(f"v_lshlrev_b32 v11, 2, v11")
    a(f"v_and_b32 v12, 1, v{V_R4}")
    a(f"v_or_b32 v11, v11, v12")
    a(f"v_xor_b32 v10, v10, v11")
    a(f"v_lshl_add_u32 v12, v10, 4, v9")
    a(f"v_xor_b32 v13, 32, v12")
    a(f"s_cmp_eq_u32 s{S_T1}, 0")
    a(f"s_cselect_b32 s{S_T2}, 64, 0")
    a(f"v_xor_b32 v14, s{S_T2}, v12")
    a(f"v_xor_b32 v15, s{S_T2}, v13")
    KA, KB, KC = 128, 160, 192
    for kap in range(8):
        da, db = KA + 4*kap, KB + 4*kap
        a(f"ds_read_b64_tr_b16 v[{da}:{da+1}], v12 offset:{kap*2048}")
        a(f"ds_read_b64_tr_b16 v[{da+2}:{da+3}], v13 offset:{kap*2048 + 512}")
        a(f"ds_read_b64_tr_b16 v[{db}:{db+1}], v14 offset:{kap*2048}")
        a(f"ds_read_b64_tr_b16 v[{db+2}:{db+3}], v15 offset:{kap*2048 + 512}")
        if kap % 2 == 1:
            a("s_waitcnt lgkmcnt(0)")
            for kk in (kap - 1, kap):
                c = "0" if kk == 0 else f"v[{KC}:{KC+15}]"
                a(f"v_mfma_f32_32x32x16_bf16 v[{KC}:{KC+15}], v[{KA+4*kk}:{KA+4*kk+3}], v[{KB+4*kk}:{KB+4*kk+3}], {c}")
    a(f"s_lshl_b32 s{S_T2}, s{S_CT}, 2")
    a(f"s_add_u32 s{S_T2}, s{S_T2}, s{S_T0}")
    a(f"s_mul_i32 s{S_T2}, s{S_T2}, 3360")
    a(f"s_mul_i32 s{S_T3}, s{S_RB}, {P32_RB}")
    a(f"s_add_u32 s{S_T2}, s{S_T2}, s{S_T3}")
    a(f"s_add_u32 s{S_T2}, s{S_T2}, {WS_P32}")
    a(f"s_lshl_b32 s{S_T3}, s{S_T1}, 7")
    a(f"s_add_u32 s{S_T2}, s{S_T2}, s{S_T3}")
    a(f"s_and_b32 s{S_T0}, s{S_T0}, 1")
    a(f"v_lshlrev_b32 v9, 2, v{V_S32}")
    a(f"s_cmp_eq_u32 s{S_T1}, 0")
    a(f"s_cselect_b32 s{S_T3}, 32, 8")
    a(f"v_cmp_gt_u32 vcc, s{S_T3}, v{V_S32}")
    a(f"v_mov_b32 v10, 0x40000000")
    a(f"v_cndmask_b32 v9, v10, v9, vcc")
    for iq in range(1, 4):
        muA = [ (m_+1 if m_ < 4 else (0 if m_ == 4 else 5)) for m_ in (2*(iq-1), 2*(iq-1)+1)]
        muB = [2*(iq-1), 2*(iq-1)+1]
        a(f"s_mov_b32 s{S_T3}, {muB[0]*640}")
        a(f"s_mov_b32 s41, {muB[1]*640}")
        a(f"s_cmp_eq_u32 s{S_T0}, 0")
        a(f"s_cselect_b32 s{S_T3}, {muA[0]*640}, s{S_T3}")
        a(f"s_cselect_b32 s41, {muA[1]*640}, s41")
        a(f"v_mov_b32 v10, s{S_T3}")
        a(f"v_mov_b32 v11, s41")
        a(f"v_cmp_eq_u32 vcc, 0, v{V_HH}")
        a(f"v_cndmask_b32 v10, v11, v10, vcc")
        a(f"v_add_u32 v10, v10, v9")
        if iq < 3:
            for e in range(4):
                a(f"buffer_store_dword v{KC+4*iq+e}, v10, s[{S_WS}:{S_WS+3}], s{S_T2} offen offset:{e*160} {ST()}")
        else:
            a(f"buffer_store_dword v{KC+12}, v10, s[{S_WS}:{S_WS+3}], s{S_T2} offen {ST()}")
            a(f"v_mov_b32 v11, 0x40000000")
            a(f"v_cmp_eq_u32 vcc, 0, v{V_HH}")
            a(f"v_cndmask_b32 v10, v11, v10, vcc")
            for e in range(1, 4):
                a(f"buffer_store_dword v{KC+12+e}, v10, s[{S_WS}:{S_WS+3}], s{S_T2} offen offset:{e*160} {ST()}")

def k1_ffn_epilogue(a):
    a(f"v_and_b32 v9, 15, v{V_S32}")
    a(f"v_lshlrev_b32 v9, 4, v9")
    a(f"v_lshl_add_u32 v9, v{V_HH}, 8, v9")
    a(f"v_lshrrev_b32 v10, 4, v{V_S32}")
    a(f"v_lshl_add_u32 v9, v10, 10, v9")
    a(f"s_lshl_b32 s{S_T0}, s{S_RB}, 1")
    a(f"s_lshr_b32 s{S_T1}, s{S_R}, 1")
    a(f"s_add_u32 s{S_T0}, s{S_T0}, s{S_T1}")
    a(f"s_mul_i32 s{S_T0}, s{S_T0}, {AF_RB}")
    a(f"s_and_b32 s{S_T1}, s{S_R}, 1")
    a(f"s_lshl_b32 s{S_T1}, s{S_T1}, 11")
    a(f"s_add_u32 s{S_T0}, s{S_T0}, s{S_T1}")
    a(f"s_add_u32 s{S_T0}, s{S_T0}, {WS_AF}")
    a(f"s_lshl_b32 s{S_T1}, s{S_CT}, 3")
    a(f"s_lshl_b32 s{S_T2}, s{S_C}, 2")
    a(f"s_add_u32 s{S_T1}, s{S_T1}, s{S_T2}")
    a(f"s_lshl_b32 s{S_T2}, s{S_T1}, 12")
    a(f"s_add_u32 s{S_T0}, s{S_T0}, s{S_T2}")
    for T in range(4):
        d = ACC + 16*T
        P = 128 + 8*T
        for i in range(16):
            a(f"v_mul_f32 v{d+i}, v{d+i}, v{V_RSTD}")
        for i in range(16):
            a(f"v_max_f32 v{d+i}, 0, v{d+i}")
        for i in range(8):
            a(f"v_cvt_pk_bf16_f32 v{P+i}, v{d+2*i}, v{d+2*i+1}")
        a(f"s_add_u32 s{S_T2}, s{S_T1}, {T}")
        a(f"s_cmp_ge_u32 s{S_T2}, 54")
        a(f"s_cbranch_scc1 K1_F_SKIP{T}")
        a(f"buffer_store_dwordx4 v[{P}:{P+3}], v9, s[{S_WS}:{S_WS+3}], s{S_T0} offen {ST()}")
        a(f"buffer_store_dwordx4 v[{P+4}:{P+7}], v9, s[{S_WS}:{S_WS+3}], s{S_T0} offen offset:512 {ST()}")
        a.label(f"K1_F_SKIP{T}")
        a(f"s_add_u32 s{S_T0}, s{S_T0}, 4096")

def k1_spare(a):
    L = V_LANE
    side_addr(a)
    a("s_waitcnt lgkmcnt(0)")
    a(f"s_mul_i32 s{S_T0}, s{S_RB}, {128*1280}")
    srd_off(a, S_X, S_PX, S_PX+1, S_T0, 128*1280)
    srd(a, S_WS, S_WSP, S_WSP+1, WS_END)
    srd(a, 64, S_PWQKV, S_PWQKV+1, 640*3840)
    side_loads(a, False)
    a(f"s_lshl_b32 s42, s{S_RB}, 3")
    a(f"s_add_u32 s42, s42, s{S_WAVE}")
    a(f"v_and_b32 v9, 7, v{L}")
    a(f"v_lshrrev_b32 v10, 3, v{L}")
    a(f"v_mul_u32_u24 v11, 1280, v10")
    a(f"v_lshl_add_u32 v60, v9, 4, v11")
    a(f"v_cmp_le_u32 vcc, 4, v10")
    a(f"v_mov_b32 v12, {16*1280}")
    a(f"v_cndmask_b32 v12, 0, v12, vcc")
    a(f"v_add_u32 v61, v60, v12")
    srd(a, 68, S_PW2, S_PW2+1, 1728*1280)
    srd(a, 72, S_PWO, S_PWO+1, 640*1280)
    a(f"s_mul_i32 s43, s{S_WAVE}, 20480")
    def blk_decode(i):
        a(f"s_add_u32 s78, s42, {128*i}")
        a(f"s_mul_i32 s79, s78, 6554")
        a(f"s_lshr_b32 s79, s79, 16")
        a(f"s_mul_i32 s77, s79, 10")
        a(f"s_sub_u32 s76, s78, s77")
    def blk_dma(i, slot):
        blk_decode(i)
        lab = f"K1_SP_WO{i}"; end = f"K1_SP_DMAD{i}"
        a(f"s_lshl_b32 s30, s76, 7")
        a(f"s_cmp_ge_u32 s79, 54")
        a(f"s_cbranch_scc1 {lab}")
        a(f"s_mul_i32 s31, s79, {32*1280}")
        a(f"s_add_u32 s31, s31, s30")
        for q in range(4):
            a(f"s_add_u32 m0, s43, {slot*4096 + q*1024}")
            a("s_nop 0")
            a(f"buffer_load_dwordx4 v60, s[68:71], s31 offen lds")
            a(f"s_add_u32 s31, s31, {8*1280}")
        a(f"s_branch {end}")
        a.label(lab)
        for q in range(4):
            a(f"s_sub_u32 s32, s79, 54")
            a(f"s_lshl_b32 s32, s32, 2")
            a(f"s_add_u32 s32, s32, {q}")
            a(f"s_mul_i32 s33, s32, 205")
            a(f"s_lshr_b32 s33, s33, 10")
            a(f"s_mul_i32 s34, s33, 5")
            a(f"s_sub_u32 s34, s32, s34")
            a(f"s_lshl_b32 s35, s34, 3")
            a(f"s_cmp_ge_u32 s34, 2")
            a(f"s_cselect_b32 s32, 4, 0")
            a(f"s_add_u32 s35, s35, s32")
            a(f"s_cmp_eq_u32 s34, 4")
            a(f"s_cselect_b32 s35, 16, s35")
            a(f"s_mul_i32 s33, s33, 40")
            a(f"s_add_u32 s35, s35, s33")
            a(f"s_mul_i32 s35, s35, 1280")
            a(f"s_add_u32 s35, s35, s30")
            a(f"s_add_u32 m0, s43, {slot*4096 + q*1024}")
            a(f"s_cmp_eq_u32 s34, 4")
            a(f"s_cbranch_scc1 K1_SP_SPL{i}_{q}")
            a(f"buffer_load_dwordx4 v60, s[72:75], s35 offen lds")
            a(f"s_branch K1_SP_SPLD{i}_{q}")
            a.label(f"K1_SP_SPL{i}_{q}")
            a(f"buffer_load_dwordx4 v61, s[72:75], s35 offen lds")
            a.label(f"K1_SP_SPLD{i}_{q}")
        a.label(end)
    for i in range(5): blk_dma(i, i)
    a("s_waitcnt vmcnt(20)")
    side_compute(a, False)
    a("s_waitcnt vmcnt(0)")
    a("s_barrier")
    side_publish(a, False, "S")
    stamp(a, 3)
    a(f"v_lshrrev_b32 v10, 4, v{L}")
    a(f"v_bfe_u32 v11, v{L}, 2, 2")
    a(f"v_lshl_add_u32 v10, v10, 3, v11")
    a(f"v_lshlrev_b32 v10, 7, v10")
    a(f"v_and_b32 v11, 3, v{L}")
    a(f"v_lshl_add_u32 v10, v11, 3, v10")
    a(f"v_add_u32 v62, s43, v10")
    a(f"v_lshlrev_b32 v63, 4, v{L}")
    def blk_proc(i, slot):
        blk_decode(i)
        R = 64
        for aa in range(4):
            for rd in range(2):
                a(f"ds_read_b64_tr_b16 v[{R+4*aa+2*rd}:{R+4*aa+2*rd+1}], v62 offset:{slot*4096 + rd*512 + aa*32}")
        a("s_waitcnt lgkmcnt(0)")
        for aa in range(4):
            a(f"s_lshl_b32 s30, s76, 2")
            a(f"s_add_u32 s30, s30, {aa}")
            a(f"s_mul_i32 s31, s30, 205")
            a(f"s_lshr_b32 s31, s31, 10")
            a(f"s_mul_i32 s32, s31, 5")
            a(f"s_sub_u32 s32, s30, s32")
            a(f"s_mul_i32 s31, s31, {WF_J}")
            a(f"s_mul_i32 s33, s79, 5120")
            a(f"s_add_u32 s31, s31, s33")
            a(f"s_lshl_b32 s32, s32, 10")
            a(f"s_add_u32 s31, s31, s32")
            a(f"s_add_u32 s31, s31, {WS_WF}")
            a(f"buffer_store_dwordx4 v[{R+4*aa}:{R+4*aa+3}], v63, s[{S_WS}:{S_WS+3}], s31 offen {ST()}")
    blk_proc(0, 0)
    a(f"s_cmp_ge_u32 s42, 100")
    a("s_cbranch_scc1 K1_SP_NO6A")
    blk_dma(5, 0)
    a.label("K1_SP_NO6A")
    for i in range(1, 5):
        a("s_nop 1")
        blk_proc(i, i)
    a(f"s_cmp_ge_u32 s42, 100")
    a("s_cbranch_scc1 K1_END")
    a("s_waitcnt vmcnt(0)")
    blk_proc(5, 0)

def gen_k1():
    a = Asm()
    k1_decode(a)
    for role, lab in (('A', 'K1_ATT'), ('F', 'K1_FFN')):
        a.label(lab)
        k1_prologue(a, role)
        k1_mainloop(a, role)
        stamp(a, 3)
        cstamp(a, 9)
        k1_correction(a, role)
        stamp(a, 4)
        if role == 'A': k1_att_epilogue(a)
        else: k1_ffn_epilogue(a)
        a("s_branch K1_END")
    a.label("K1_SPARE")
    k1_spare(a)
    a.label("K1_END")
    if G.PROF: a("s_waitcnt vmcnt(0)")
    stamp(a, 7)
    stamp_flush(a, 0, 10, S_WAVE, S_WSP)
    a.label("K1_EXIT")
    a("s_endpgm")
    return a
```

```python
from gencommon import *

K2_D = 4

class VQ:
    def __init__(self, a): self.a = a; self.q = []
    def issue(self, line, tag):
        self.a(line); self.q.append(tag)
        assert len(self.q) <= 63, len(self.q)
    def need(self, pred):
        last = -1
        for i, t in enumerate(self.q):
            if pred(t): last = i
        if last < 0: return
        n = len(self.q) - 1 - last
        self.a(f"s_waitcnt vmcnt({n})")
        self.q = self.q[last+1:]
    def drain(self):
        self.a("s_waitcnt vmcnt(0)"); self.q = []

L_CNT = 2048
L_XP = 4096
L_EX = 4096 + 81920
K2_LDS = 4096 + 81920 + 61440

def prefetch(a):
    a("s_and_b32 s52, s28, 3")
    a("s_and_b32 s53, s27, 7")
    a("v_and_b32 v5, 31, v1")
    a("v_lshlrev_b32 v5, 7, v5")
    a("v_lshrrev_b32 v6, 5, v1")
    a("v_lshlrev_b32 v6, 14, v6")
    a("v_add_u32 v5, v5, v6")
    a("v_lshlrev_b32 v6, 7, v1")
    a("v_mov_b32 v7, 0x40000000")
    a("v_cmp_gt_u32 vcc, 40, v1")
    a("v_cndmask_b32 v6, v7, v6, vcc")
    a("s_lshl_b32 s54, s52, 12")
    a("s_mul_i32 s55, s53, 5120")
    order = []
    for m in range(10):
        order.append(('W', m))
        if m < 7: order.append(('A', m))
    skip = opt('pfskip', 0)
    for kind, m in order:
        if kind == 'A':
            if m >= skip: a(f"buffer_load_dword v8, v5, s[8:11], s54 offen")
            a("s_add_u32 s54, s54, 32768")
        else:
            if m >= skip: a(f"buffer_load_dword v9, v6, s[12:15], s55 offen")
            a("s_add_u32 s55, s55, 40960")
    a("s_waitcnt vmcnt(0)")

def gen_k2():
    a = Asm()
    D = K2_D
    ACCB = 16
    BUF = 96
    XR = 240
    def acc(aa, beta): return ACCB + 4*(5*beta + aa)
    def wf(d, aa): return BUF + 36*d + 4*aa
    def af(d, beta): return BUF + 36*d + 20 + 4*beta
    a("s_cmp_ge_u32 s2, 256")
    a("s_cbranch_scc1 K2_EXIT")
    a(f"s_load_dwordx2 s[6:7], s[0:1], {KA_X}")
    a(f"s_load_dwordx4 s[20:23], s[0:1], {KA_OUT}")
    a(f"s_load_dwordx2 s[4:5], s[0:1], {KA_WS}")
    stamp(a, 0, wait=False)
    a("v_and_b32 v1, 63, v0")
    a("v_lshrrev_b32 v7, 6, v0")
    a("v_mov_b32 v8, 0")
    a("v_readfirstlane_b32 s25, v7")
    a("v_mov_b32 v9, 0")
    a(f"v_mov_b32 v10, {L_CNT}")
    a("ds_write_b64 v10, v[8:9]")
    a("s_and_b32 s24, s25, 3")
    a("s_and_b32 s26, s2, 7")
    a("s_lshr_b32 s49, s2, 3")
    a("s_lshr_b32 s27, s26, 1")
    a("s_and_b32 s26, s26, 1")
    a("s_lshl_b32 s27, s27, 3")
    a("s_lshr_b32 s28, s49, 2")
    a("s_add_u32 s27, s27, s28")
    a("s_lshl_b32 s26, s26, 2")
    a("s_and_b32 s28, s49, 3")
    a("s_add_u32 s28, s28, s26")
    if opt('rot', 1) == 1:
        a("s_add_u32 s50, s27, s28")
        a("s_and_b32 s50, s50, 1")
        a("s_mul_i32 s50, s50, 27")
    elif opt('rot', 1) == 2:
        a("s_mul_i32 s50, s49, 27")
        a("s_lshr_b32 s50, s50, 4")
    elif opt('rot', 1) == 3:
        a("s_and_b32 s50, s27, 3")
        a("s_and_b32 s51, s28, 3")
        a("s_add_u32 s50, s50, s51")
        a("s_and_b32 s50, s50, 3")
        a("s_mul_i32 s50, s50, 13")
    else:
        a("s_mov_b32 s50, 0")
    a("v_lshlrev_b32 v2, 4, v1")
    a("v_add_u32 v3, 4096, v2")
    for beta in range(4):
        a(f"s_add_u32 s29, s24, {beta}")
        a("s_and_b32 s29, s29, 3")
        a("s_lshl_b32 s29, s29, 10")
        a(f"v_add_u32 v{240+10+beta}, s29, v2")
    AV = 250
    a("s_waitcnt lgkmcnt(0)")
    a("s_barrier")
    a(f"s_mul_i32 s29, s27, {AF_RB}")
    a(f"s_add_u32 s29, s29, {WS_AF}")
    srd_off(a, 8, 4, 5, 29, AF_RB)
    a(f"s_mul_i32 s29, s28, {WF_J}")
    a(f"s_add_u32 s29, s29, {WS_WF}")
    srd_off(a, 12, 4, 5, 29, WF_J)
    a("s_mov_b32 s42, s22"); a("s_mov_b32 s43, s23")
    a("s_lshr_b32 s29, s27, 2")
    a("s_lshl_b32 s29, s29, 2")
    a("v_mov_b32 v254, s29")

    def stream(role, kqs, gate_n, vq, nogate=False, nomfma=False):
        NST = len(kqs)
        def set_off(n):
            base, lim = kqs[n]
            lines = [f"s_add_u32 s29, s24, {base}"]
            if lim is not None:
                lines += [f"s_cmp_lt_u32 s29, {lim}", "s_cselect_b32 s29, s29, 0x1000"]
            if n < gate_n and opt('rot', 1):
                lines += ["s_add_u32 s29, s29, s50", "s_cmp_ge_u32 s29, 54", "s_cselect_b32 s51, 54, 0", "s_sub_u32 s29, s29, s51"]
            lines += ["s_lshl_b32 s30, s29, 12", "s_mul_i32 s31, s29, 5120"]
            return lines
        def loadW(n, aa):
            r = wf(n % D, aa)
            if aa < 4: return f"buffer_load_dwordx4 v[{r}:{r+3}], v2, s[12:15], s31 offen offset:{aa*1024}"
            return f"buffer_load_dwordx4 v[{r}:{r+3}], v3, s[12:15], s31 offen"
        def loadA(n, beta):
            r = af(n % D, beta)
            pol = " sc1" if n >= gate_n else ""
            return f"buffer_load_dwordx4 v[{r}:{r+3}], v{AV+beta}, s[8:11], s30 offen{pol}"
        def gate():
            stamp(a, 7)
            vq.need(lambda t: t[0] == 'F')
            a.label(f"K2_CHK{role}")
            a("v_readfirstlane_b32 s29, v255")
            a("s_cmp_eq_u32 s29, 32")
            a(f"s_cbranch_scc1 K2_GO{role}")
            a("s_sleep 8")
            a("global_load_dword v255, v254, s[42:43] sc1")
            a("s_waitcnt vmcnt(0)")
            a(f"s_branch K2_CHK{role}")
            a.label(f"K2_GO{role}")
            stamp(a, 8)
        npre = min(D, gate_n)
        for n in range(npre):
            for ln in set_off(n): a(ln)
            for aa in range(5): vq.issue(loadW(n, aa), ('S', n))
            for beta in range(4): vq.issue(loadA(n, beta), ('S', n))
        issued = npre
        fl = gate_n - D - 1
        assert fl >= 0
        for n in range(NST):
            vq.need(lambda t: t == ('S', n))
            if n == fl and not nogate: vq.issue("global_load_dword v255, v254, s[42:43] sc1", ('F', 0))
            if n == 0 and role != 'Z':
                stamp(a, 1)
                if role == 'Y': cstamp(a, 5)
            d = n % D
            nl = n + D
            more = nl < NST
            if more:
                if nl == gate_n and not nogate: gate()
                for ln in set_off(nl): a(ln)
            for aa in range(5):
                for beta in range(4):
                    c = "0" if n == 0 else f"v[{acc(aa,beta)}:{acc(aa,beta)+3}]"
                    if not nomfma: a(f"v_mfma_f32_16x16x32_bf16 v[{acc(aa,beta)}:{acc(aa,beta)+3}], v[{wf(d,aa)}:{wf(d,aa)+3}], v[{af(d,beta)}:{af(d,beta)+3}], {c}")
                if more: vq.issue(loadW(nl, aa), ('S', nl))
            if more:
                for beta in range(4): vq.issue(loadA(nl, beta), ('S', nl))

    a("s_cmp_lt_u32 s25, 4")
    a("s_cbranch_scc1 K2_Y")
    if opt('simple'):
        if opt('pf'):
            a("s_cmp_lg_u32 s25, 4")
            a("s_cbranch_scc1 K2_EXIT")
            prefetch(a)
        a("s_endpgm")
    if opt('xprioA', 3): a(f"s_setprio {opt('xprioA', 3)}")
    a("s_and_b32 s36, s2, 31")
    a("s_lshr_b32 s37, s2, 5")
    a("v_and_b32 v6, 31, v1")
    a("v_lshrrev_b32 v5, 5, v1")
    a("v_and_b32 v0, 255, v0")
    a("v_lshlrev_b32 v12, 4, v0")
    a("v_mov_b32 v13, 0x40000000")
    a("v_cmp_gt_u32 vcc, 3360, v12")
    a("v_cndmask_b32 v13, v13, v12, vcc")
    a("v_lshlrev_b32 v14, 4, v6")
    a("v_lshl_add_u32 v15, v5, 9, v14")
    a("v_add_u32 v14, 2048, v14")
    a("s_mul_i32 s38, s36, 3360")
    a(f"s_add_u32 s38, s38, {WS_P32}")
    a("s_lshl_b32 s39, s37, 3")
    a("s_lshl_b32 s29, s24, 1")
    a("s_add_u32 s39, s39, s29")
    a(f"s_mul_i32 s40, s36, {PQ_HEAD}")
    a("s_mul_i32 s29, s39, 2560")
    a("s_add_u32 s40, s40, s29")
    a(f"s_add_u32 s40, s40, {WS_PQ}")
    srd(a, 44, 4, 5, WS_END)
    PB = 96
    for rb in range(16):
        a(f"buffer_load_dwordx4 v[{16+4*rb}:{19+4*rb}], v13, s[44:47], s38 offen")
        if rb < 15: a(f"s_add_u32 s38, s38, {P32_RB}")
    for tt in range(2):
        B = PB + 12*tt
        a(f"buffer_load_dwordx4 v[{B}:{B+3}], v15, s[44:47], s40 offen")
        a(f"buffer_load_dwordx4 v[{B+4}:{B+7}], v15, s[44:47], s40 offen offset:1024")
        a(f"buffer_load_dwordx4 v[{B+8}:{B+11}], v14, s[44:47], s40 offen")
        if tt == 0: a("s_add_u32 s40, s40, 2560")
    a("v_lshrrev_b32 v7, 2, v6")
    a("v_and_b32 v12, 3, v6")
    a("v_and_b32 v13, 1, v7")
    a("v_lshlrev_b32 v13, 1, v13")
    a("v_bfe_u32 v14, v7, 1, 1")
    a("v_or_b32 v13, v13, v14")
    a("v_cmp_eq_u32 vcc, 4, v7")
    a("v_cndmask_b32 v13, v13, 4, vcc")
    a("v_lshl_add_u32 v13, v13, 2, v12")
    a("v_mul_u32_u24 v13, 80, v13")
    a("v_mov_b32 v14, 1680")
    a("v_cmp_ge_u32 vcc, 4, v7")
    a("v_cndmask_b32 v13, v14, v13, vcc")
    a("v_and_b32 v15, 27, v6")
    a("v_cmp_eq_u32 vcc, 24, v15")
    a("v_mov_b32 v15, 1600")
    a("v_cndmask_b32 v13, v13, v15, vcc")
    a("v_lshl_add_u32 v12, v5, 4, v13")
    a("v_cmp_eq_u32 vcc, 1680, v13")
    a("v_cndmask_b32 v12, v12, v14, vcc")
    a("v_add_u32 v13, 64, v13")
    a("v_cndmask_b32 v13, v13, v14, vcc")
    a("v_cmp_eq_u32 vcc, 0, v5")
    a("v_cndmask_b32 v13, v14, v13, vcc")
    a("s_lshr_b32 s32, s36, 1")
    a("s_and_b32 s33, s36, 1")
    a("s_mul_i32 s32, s32, 5")
    a("s_lshl_b32 s34, s33, 1")
    a("s_add_u32 s34, s34, s32")
    def omoff(dst, src):
        a(f"s_lshr_b32 s{dst}, s{src}, 2")
        a(f"s_lshl_b32 s{dst}, s{dst}, 12")
        a(f"s_and_b32 s29, s{src}, 3")
        a(f"s_lshl_b32 s29, s29, 8")
        a(f"s_add_u32 s{dst}, s{dst}, s29")
    omoff(35, 34)
    a("s_add_u32 s34, s34, 1")
    omoff(41, 34)
    a("s_add_u32 s34, s32, 4")
    omoff(48, 34)
    a("s_lshl_b32 s33, s33, 3")
    a("s_add_u32 s48, s48, s33")
    a("v_mov_b32 v14, s35")
    a("v_mov_b32 v15, s41")
    a("v_cmp_eq_u32 vcc, 0, v5")
    a("v_cndmask_b32 v14, v15, v14, vcc")
    a("v_and_b32 v15, 15, v6")
    a("v_lshlrev_b32 v15, 4, v15")
    a("v_lshrrev_b32 v7, 4, v6")
    a("v_lshl_add_u32 v15, v7, 10, v15")
    a("v_add_u32 v14, v14, v15")
    a("v_add_u32 v15, s48, v15")
    a("v_mov_b32 v7, 0x40000000")
    a("v_cndmask_b32 v15, v7, v15, vcc")
    a("s_waitcnt vmcnt(6)")
    stamp(a, 2)
    for e in range(4): a(f"v_add_f32 v{16+e}, v{16+e}, v{20+e}")
    for rb in range(2, 16):
        for e in range(4): a(f"v_add_f32 v{16+e}, v{16+e}, v{16+4*rb+e}")
    a("v_cvt_pk_bf16_f32 v16, v16, v17")
    a("v_cvt_pk_bf16_f32 v17, v18, v19")
    a("v_lshlrev_b32 v7, 3, v0")
    a("ds_write_b64 v7, v[16:17]")
    a("s_waitcnt lgkmcnt(0)")
    a("v_mov_b32 v8, 1")
    a("s_mov_b64 exec, 1")
    a("ds_add_u32 v10, v8")
    a("s_mov_b64 exec, -1")
    a.label("K2_HSPIN")
    a("ds_read_b32 v9, v10")
    a("s_waitcnt lgkmcnt(0)")
    a("v_readfirstlane_b32 s29, v9")
    a("s_cmp_eq_u32 s29, 4")
    a("s_cbranch_scc1 K2_HGO")
    a("s_sleep 1")
    a("s_branch K2_HSPIN")
    a.label("K2_HGO")
    AF_ = PB + 24
    a(f"ds_read_b128 v[{AF_}:{AF_+3}], v12")
    a(f"ds_read_b128 v[{AF_+4}:{AF_+7}], v12 offset:32")
    a(f"ds_read_b128 v[{AF_+8}:{AF_+11}], v13")
    a("s_waitcnt vmcnt(0) lgkmcnt(0)")
    for tt in range(2):
        B = PB + 12*tt
        C = 16 + 16*tt
        for t in range(3):
            c = "0" if t == 0 else f"v[{C}:{C+15}]"
            a(f"v_mfma_f32_32x32x16_bf16 v[{C}:{C+15}], v[{AF_+4*t}:{AF_+4*t+3}], v[{B+4*t}:{B+4*t+3}], {c}")
    a("s_lshr_b32 s29, s39, 1")
    a(f"s_mul_i32 s29, s29, {AF_RB}")
    for tt in range(2):
        C = 16 + 16*tt
        a(f"v_add_f32 v{C+12}, {hex(0x358637bd)}, v{C+12}")
        a(f"v_rcp_f32 v{C+12}, v{C+12}")
        for i in range(12): a(f"v_mul_f32 v{C+i}, v{C+i}, v{C+12}")
        P = 48 + 8*tt
        for i in range(6): a(f"v_cvt_pk_bf16_f32 v{P+i}, v{C+2*i}, v{C+2*i+1}")
        a(f"s_add_u32 s32, s29, {WS_AF + 54*4096 + tt*2048}")
        a(f"buffer_store_dwordx4 v[{P}:{P+3}], v14, s[44:47], s32 offen sc1")
        a(f"buffer_store_dwordx2 v[{P+4}:{P+5}], v15, s[44:47], s32 offen sc1")
    stamp(a, 9)
    a("s_waitcnt vmcnt(0)")
    a("s_mov_b64 exec, 1")
    a("ds_add_rtn_u32 v9, v10, v8 offset:4")
    a("s_waitcnt lgkmcnt(0)")
    a("s_mov_b64 exec, -1")
    a("v_readfirstlane_b32 s29, v9")
    a("s_cmp_eq_u32 s29, 3")
    a("s_cbranch_scc0 K2_HEND")
    a("s_lshl_b32 s29, s37, 2")
    a("v_mov_b32 v12, s29")
    a("s_mov_b64 exec, 1")
    a("global_atomic_add v12, v8, s[42:43] sc1")
    a("s_mov_b64 exec, -1")
    a.label("K2_HEND")
    if not opt('xprio', 1): a("s_setprio 0")
    stamp(a, 4)
    if opt('helper'):
        if G.PROF: stamp_flush(a, 2, 10, 25, 4)
        a("s_endpgm")
    vqx = VQ(a)
    kx = [(36 + 4*n, None) for n in range(4)] + [(52, 54)] + [(62, None), (66, None), (70, None)]
    stream('X', kx, 5, vqx)
    stamp(a, 5) if False else None
    a("s_mul_i32 s29, s24, 20480")
    a(f"s_add_u32 s29, s29, {L_XP}")
    a("v_add_u32 v5, s29, v2")
    for beta in range(4):
        for aa in range(5):
            a(f"ds_write_b128 v5, v[{acc(aa,beta)}:{acc(aa,beta)+3}] offset:{(5*beta+aa)*1024}")
    a("s_waitcnt lgkmcnt(0)")
    if G.PROF:
        stamp(a, 3)
        stamp_flush(a, 2, 10, 25, 4)
    a("s_barrier")
    a("s_endpgm")
    a.label("K2_Y")
    if opt('yprio'): a(f"s_setprio {opt('yprio')}")
    srd(a, 16, 6, 7, 2048*1280)
    srd(a, 20, 20, 21, 2048*1280)
    a("v_and_b32 v4, 15, v1")
    a("s_lshl_b32 s29, s27, 6")
    a("s_lshl_b32 s32, s24, 4")
    a("s_add_u32 s29, s29, s32")
    a("v_add_u32 v4, s29, v4")
    a("v_mul_u32_u24 v4, 1280, v4")
    a("v_lshrrev_b32 v7, 4, v1")
    a("v_lshl_add_u32 v4, v7, 3, v4")
    a("s_mul_i32 s29, s28, 160")
    a("v_add_u32 v4, s29, v4")
    vqy = VQ(a)
    def resid():
        for aa in range(5):
            vqy.issue(f"buffer_load_dwordx2 v[{XR+2*aa}:{XR+2*aa+1}], v4, s[16:19], 0 offen offset:{32*aa}", ('X', aa))
    if not opt('latex'): resid()
    if opt('helper'):
        ky = [(4*n, None) for n in range(13)] + [(52, 54)] + [(54 + 4*n, None) for n in range(5)]
        stream('Y', ky, 14, vqy)
    elif opt('simple'):
        ky = [(4*n, None) for n in range(13)] + [(52, 54)] + [(54 + 4*n, None) for n in range(5)]
        if opt('twice'):
            stream('Z', ky, 14, vqy, nogate=True)
            vqy.drain()
        stream('Y', ky, 14, vqy, nogate=True, nomfma=opt('nomfma'))
    else:
        ky = [(4*n, None) for n in range(9)] + [(54, None), (58, None)]
        stream('Y', ky, 9, vqy)
    if opt('latex'): resid()
    stamp(a, 2)
    cstamp(a, 6)
    R = BUF
    if not opt('simple') and not opt('helper'):
        a("s_barrier")
        a("s_mul_i32 s29, s24, 20480")
        a(f"s_add_u32 s29, s29, {L_XP}")
        a("v_add_u32 v5, s29, v2")
        for half in range(2):
            for i in range(10):
                t = 10*half + i
                a(f"ds_read_b128 v[{R+4*t}:{R+4*t+3}], v5 offset:{t*1024}")
        a("s_waitcnt lgkmcnt(10)")
        for t in range(10):
            for e in range(4): a(f"v_add_f32 v{ACCB+4*t+e}, v{ACCB+4*t+e}, v{R+4*t+e}")
        a("s_waitcnt lgkmcnt(0)")
        for t in range(10, 20):
            for e in range(4): a(f"v_add_f32 v{ACCB+4*t+e}, v{ACCB+4*t+e}, v{R+4*t+e}")
    for beta in range(1, 4):
        a(f"s_add_u32 s29, s24, {beta}")
        a("s_and_b32 s29, s29, 3")
        a("s_mul_i32 s29, s29, 15360")
        a(f"s_add_u32 s29, s29, {L_EX + (beta-1)*5120}")
        a(f"v_add_u32 v5, s29, v2")
        for aa in range(5):
            a(f"ds_write_b128 v5, v[{acc(aa,beta)}:{acc(aa,beta)+3}] offset:{aa*1024}")
    a("s_waitcnt lgkmcnt(0)")
    a("s_barrier")
    a("s_mul_i32 s29, s24, 15360")
    a(f"s_add_u32 s29, s29, {L_EX}")
    a(f"v_add_u32 v5, s29, v2")
    for sl in range(3):
        for aa in range(5):
            r = R + 20*sl + 4*aa
            a(f"ds_read_b128 v[{r}:{r+3}], v5 offset:{sl*5120 + aa*1024}")
    a("s_waitcnt vmcnt(0) lgkmcnt(0)")
    for sl in range(3):
        for aa in range(5):
            for e in range(4):
                a(f"v_add_f32 v{acc(aa,0)+e}, v{acc(aa,0)+e}, v{R + 20*sl + 4*aa + e}")
    for aa in range(5):
        x0, x1 = XR + 2*aa, XR + 2*aa + 1
        c = acc(aa, 0)
        a(f"v_lshlrev_b32 v6, 16, v{x0}")
        a(f"v_and_b32 v7, 0xffff0000, v{x0}")
        a(f"v_add_f32 v{c}, v{c}, v6")
        a(f"v_add_f32 v{c+1}, v{c+1}, v7")
        a(f"v_lshlrev_b32 v6, 16, v{x1}")
        a(f"v_and_b32 v7, 0xffff0000, v{x1}")
        a(f"v_add_f32 v{c+2}, v{c+2}, v6")
        a(f"v_add_f32 v{c+3}, v{c+3}, v7")
        a(f"v_cvt_pk_bf16_f32 v{x0}, v{c}, v{c+1}")
        a(f"v_cvt_pk_bf16_f32 v{x1}, v{c+2}, v{c+3}")
        a(f"buffer_store_dwordx2 v[{x0}:{x1}], v4, s[20:23], 0 offen offset:{32*aa}")
    if G.PROF: a("s_waitcnt vmcnt(0)")
    stamp(a, 3)
    stamp_flush(a, 2, 10, 24, 4)
    a.label("K2_EXIT")
    a("s_endpgm")
    return a
```

```python
from gencommon import *
import k1
from k1 import (S_WAVE, S_RB, S_CT, S_MI, S_T0, S_T1, S_T2, S_T3, S_WS, S_PX, S_DBG, S_WSP, V_LANE, L_MISC, K1_LDS,
                k1_decode, k1_prologue, k1_mainloop, k1_correction, k1_att_epilogue, k1_ffn_epilogue, k1_spare, one_lane_atomic)
from k2 import VQ

S_POUT = 58
L_CNT = L_MISC + 12288
L_EX = 4096
D_WF = 31
C_H, C_KV, C_O = WS_CNT, WS_CNT + 2048, WS_CNT + 3072

def poll(a, name, addr_v, val_v, expect, sleep, preloaded=False, base=S_WSP):
    if not preloaded:
        a(f"global_load_dword v{val_v}, v{addr_v}, s[{base}:{base+1}] sc1")
        a("s_waitcnt vmcnt(0)")
    a.label(f"{name}_CHK")
    a(f"v_readfirstlane_b32 s29, v{val_v}")
    a(f"s_cmp_eq_u32 s29, {expect}")
    a(f"s_cbranch_scc1 {name}_OK")
    a(f"s_sleep {sleep}")
    a(f"global_load_dword v{val_v}, v{addr_v}, s[{base}:{base+1}] sc1")
    a("s_waitcnt vmcnt(0)")
    a(f"s_branch {name}_CHK")
    a.label(f"{name}_OK")

def role_end(a, tag, cnt_lines, base):
    a("s_waitcnt vmcnt(0) lgkmcnt(0)")
    a("s_barrier")
    a(f"s_cmp_lg_u32 s{S_WAVE}, 0")
    a(f"s_cbranch_scc1 KF_NOPUB_{tag}")
    for ln in cnt_lines: a(ln)
    one_lane_atomic(a, S_T0, base)
    a.label(f"KF_NOPUB_{tag}")
    a("s_branch KF_P2")

def phase2(a):
    D = 4
    ACCB = 16
    BUF = 96
    XR = 240
    AV = 250
    def acc(aa, beta): return ACCB + 4*(5*beta + aa)
    def wf(d, aa): return BUF + 36*d + 4*aa
    def af(d, beta): return BUF + 36*d + 20 + 4*beta
    a.label("KF_P2")
    stamp(a, 7)
    a(f"s_and_b32 s25, s{S_WAVE}, 3")
    a("s_and_b32 s26, s2, 7")
    a("s_lshr_b32 s30, s2, 3")
    a("s_lshr_b32 s27, s26, 1")
    a("s_and_b32 s26, s26, 1")
    a("s_lshl_b32 s27, s27, 3")
    a("s_lshr_b32 s28, s30, 2")
    a("s_add_u32 s27, s27, s28")
    a("s_lshl_b32 s26, s26, 2")
    a("s_and_b32 s28, s30, 3")
    a("s_add_u32 s28, s28, s26")
    a(f"s_cmp_lg_u32 s{S_WAVE}, 0")
    a(f"s_cbranch_scc1 KF_G1DONE")
    a("s_lshr_b32 s29, s27, 1")
    a("s_lshl_b32 s29, s29, 2")
    a("v_mov_b32 v11, s29")
    a("s_lshr_b32 s29, s27, 1")
    a("s_lshl_b32 s29, s29, 7")
    a(f"s_add_u32 s29, s29, {C_H}")
    a("v_mov_b32 v12, s29")
    a(f"v_mov_b32 v13, {4*D_WF}")
    a(f"global_load_dword v15, v13, s[{S_DBG}:{S_DBG+1}] sc1")
    poll(a, "KF_PS", 11, 14, 8, 16, base=S_DBG)
    poll(a, "KF_PH", 12, 14, 7, opt('hsleep', 12))
    poll(a, "KF_PW", 13, 15, 16, 16, preloaded=True, base=S_DBG)
    a.label("KF_G1DONE")
    a(f"v_mov_b32 v8, 0")
    a(f"v_mov_b32 v9, 0")
    a(f"v_mov_b32 v10, {L_CNT}")
    a("ds_write_b64 v10, v[8:9]")
    a("ds_write_b64 v10, v[8:9] offset:8")
    a("s_waitcnt lgkmcnt(0)")
    a("s_barrier")
    stamp(a, 8)
    a(f"v_lshlrev_b32 v2, 4, v{V_LANE}")
    a(f"s_cmp_lt_u32 s{S_WAVE}, 4")
    a("s_cbranch_scc1 KF_Y")
    a("s_setprio 3")
    a("s_and_b32 s36, s2, 31")
    a("s_lshr_b32 s37, s2, 5")
    a(f"v_and_b32 v6, 31, v{V_LANE}")
    a(f"v_lshrrev_b32 v5, 5, v{V_LANE}")
    a(f"s_lshl_b32 s29, s25, 6")
    a(f"v_add_u32 v0, s29, v{V_LANE}")
    a("v_lshlrev_b32 v12, 4, v0")
    a("v_mov_b32 v13, 0x40000000")
    a("v_cmp_gt_u32 vcc, 3360, v12")
    a("v_cndmask_b32 v13, v13, v12, vcc")
    a("v_lshlrev_b32 v14, 4, v6")
    a("v_lshl_add_u32 v15, v5, 9, v14")
    a("v_add_u32 v14, 2048, v14")
    a("s_mul_i32 s38, s36, 3360")
    a(f"s_add_u32 s38, s38, {WS_P32}")
    a("s_lshl_b32 s39, s37, 3")
    a("s_lshl_b32 s29, s25, 1")
    a("s_add_u32 s39, s39, s29")
    a(f"s_mul_i32 s40, s36, {PQ_HEAD}")
    a("s_mul_i32 s29, s39, 2560")
    a("s_add_u32 s40, s40, s29")
    a(f"s_add_u32 s40, s40, {WS_PQ}")
    a(f"v_mov_b32 v10, {L_CNT}")
    a("v_mov_b32 v8, 1")
    a("s_cmp_lg_u32 s25, 0")
    a("s_cbranch_scc1 KF_XWAIT")
    a("s_lshr_b32 s29, s36, 2")
    a("s_lshl_b32 s29, s29, 2")
    a("s_add_u32 s29, s29, 64")
    a("v_mov_b32 v7, s29")
    poll(a, "KF_PC", 7, 9, 16, 16, base=S_DBG)
    a("s_lshr_b32 s29, s36, 2")
    a("s_lshl_b32 s29, s29, 7")
    a(f"s_add_u32 s29, s29, {C_KV}")
    a("v_mov_b32 v7, s29")
    poll(a, "KF_PK", 7, 9, 16, opt('kvsleep', 20))
    a("ds_write_b32 v10, v8 offset:8")
    a("s_branch KF_XGO")
    a.label("KF_XWAIT")
    a("ds_read_b32 v9, v10 offset:8")
    a("s_waitcnt lgkmcnt(0)")
    a("v_readfirstlane_b32 s29, v9")
    a("s_cmp_eq_u32 s29, 1")
    a("s_cbranch_scc1 KF_XGO")
    a("s_sleep 4")
    a("s_branch KF_XWAIT")
    a.label("KF_XGO")
    stamp(a, 9)
    PB = 96
    W = f"s[{S_WS}:{S_WS+3}]"
    for rb in range(16):
        a(f"buffer_load_dwordx4 v[{16+4*rb}:{19+4*rb}], v13, {W}, s38 offen sc1")
        if rb < 15: a(f"s_add_u32 s38, s38, {P32_RB}")
    for tt in range(2):
        B = PB + 12*tt
        a(f"buffer_load_dwordx4 v[{B}:{B+3}], v15, {W}, s40 offen sc1")
        a(f"buffer_load_dwordx4 v[{B+4}:{B+7}], v15, {W}, s40 offen offset:1024 sc1")
        a(f"buffer_load_dwordx4 v[{B+8}:{B+11}], v14, {W}, s40 offen sc1")
        if tt == 0: a("s_add_u32 s40, s40, 2560")
    a("v_lshrrev_b32 v7, 2, v6")
    a("v_and_b32 v12, 3, v6")
    a("v_and_b32 v13, 1, v7")
    a("v_lshlrev_b32 v13, 1, v13")
    a("v_bfe_u32 v14, v7, 1, 1")
    a("v_or_b32 v13, v13, v14")
    a("v_cmp_eq_u32 vcc, 4, v7")
    a("v_cndmask_b32 v13, v13, 4, vcc")
    a("v_lshl_add_u32 v13, v13, 2, v12")
    a("v_mul_u32_u24 v13, 80, v13")
    a("v_mov_b32 v14, 1680")
    a("v_cmp_ge_u32 vcc, 4, v7")
    a("v_cndmask_b32 v13, v14, v13, vcc")
    a("v_and_b32 v15, 27, v6")
    a("v_cmp_eq_u32 vcc, 24, v15")
    a("v_mov_b32 v15, 1600")
    a("v_cndmask_b32 v13, v13, v15, vcc")
    a("v_lshl_add_u32 v12, v5, 4, v13")
    a("v_cmp_eq_u32 vcc, 1680, v13")
    a("v_cndmask_b32 v12, v12, v14, vcc")
    a("v_add_u32 v13, 64, v13")
    a("v_cndmask_b32 v13, v13, v14, vcc")
    a("v_cmp_eq_u32 vcc, 0, v5")
    a("v_cndmask_b32 v13, v14, v13, vcc")
    a("s_lshr_b32 s32, s36, 1")
    a("s_and_b32 s33, s36, 1")
    a("s_mul_i32 s32, s32, 5")
    a("s_lshl_b32 s34, s33, 1")
    a("s_add_u32 s34, s34, s32")
    def omoff(dst, src):
        a(f"s_lshr_b32 s{dst}, s{src}, 2")
        a(f"s_lshl_b32 s{dst}, s{dst}, 12")
        a(f"s_and_b32 s29, s{src}, 3")
        a(f"s_lshl_b32 s29, s29, 8")
        a(f"s_add_u32 s{dst}, s{dst}, s29")
    omoff(35, 34)
    a("s_add_u32 s34, s34, 1")
    omoff(41, 34)
    a("s_add_u32 s34, s32, 4")
    omoff(26, 34)
    a("s_lshl_b32 s33, s33, 3")
    a("s_add_u32 s26, s26, s33")
    a("v_mov_b32 v14, s35")
    a("v_mov_b32 v15, s41")
    a("v_cmp_eq_u32 vcc, 0, v5")
    a("v_cndmask_b32 v14, v15, v14, vcc")
    a("v_and_b32 v15, 15, v6")
    a("v_lshlrev_b32 v15, 4, v15")
    a("v_lshrrev_b32 v7, 4, v6")
    a("v_lshl_add_u32 v15, v7, 10, v15")
    a("v_add_u32 v14, v14, v15")
    a("v_add_u32 v15, s26, v15")
    a("v_mov_b32 v7, 0x40000000")
    a("v_cndmask_b32 v15, v7, v15, vcc")
    a("s_waitcnt vmcnt(6)")
    for e in range(4): a(f"v_add_f32 v{16+e}, v{16+e}, v{20+e}")
    for rb in range(2, 16):
        for e in range(4): a(f"v_add_f32 v{16+e}, v{16+e}, v{16+4*rb+e}")
    a("v_cvt_pk_bf16_f32 v16, v16, v17")
    a("v_cvt_pk_bf16_f32 v17, v18, v19")
    a("v_lshlrev_b32 v7, 3, v0")
    a("ds_write_b64 v7, v[16:17]")
    a("s_waitcnt lgkmcnt(0)")
    a("s_mov_b64 exec, 1")
    a("ds_add_u32 v10, v8")
    a("s_mov_b64 exec, -1")
    a.label("KF_HSPIN")
    a("ds_read_b32 v9, v10")
    a("s_waitcnt lgkmcnt(0)")
    a("v_readfirstlane_b32 s29, v9")
    a("s_cmp_eq_u32 s29, 4")
    a("s_cbranch_scc1 KF_HGO")
    a("s_sleep 1")
    a("s_branch KF_HSPIN")
    a.label("KF_HGO")
    AF_ = PB + 24
    a(f"ds_read_b128 v[{AF_}:{AF_+3}], v12")
    a(f"ds_read_b128 v[{AF_+4}:{AF_+7}], v12 offset:32")
    a(f"ds_read_b128 v[{AF_+8}:{AF_+11}], v13")
    a("s_waitcnt vmcnt(0) lgkmcnt(0)")
    for tt in range(2):
        B = PB + 12*tt
        C = 16 + 16*tt
        for t in range(3):
            c = "0" if t == 0 else f"v[{C}:{C+15}]"
            a(f"v_mfma_f32_32x32x16_bf16 v[{C}:{C+15}], v[{AF_+4*t}:{AF_+4*t+3}], v[{B+4*t}:{B+4*t+3}], {c}")
    a("s_lshr_b32 s29, s39, 1")
    a(f"s_mul_i32 s29, s29, {AF_RB}")
    for tt in range(2):
        C = 16 + 16*tt
        a(f"v_add_f32 v{C+12}, {hex(0x358637bd)}, v{C+12}")
        a(f"v_rcp_f32 v{C+12}, v{C+12}")
        for i in range(12): a(f"v_mul_f32 v{C+i}, v{C+i}, v{C+12}")
        P = 48 + 8*tt
        for i in range(6): a(f"v_cvt_pk_bf16_f32 v{P+i}, v{C+2*i}, v{C+2*i+1}")
        a(f"s_add_u32 s32, s29, {WS_AF + 54*4096 + tt*2048}")
        a(f"buffer_store_dwordx4 v[{P}:{P+3}], v14, {W}, s32 offen sc1")
        a(f"buffer_store_dwordx2 v[{P+4}:{P+5}], v15, {W}, s32 offen sc1")
    a("s_waitcnt vmcnt(0)")
    a("s_mov_b64 exec, 1")
    a("ds_add_rtn_u32 v9, v10, v8 offset:4")
    a("s_waitcnt lgkmcnt(0)")
    a("s_mov_b64 exec, -1")
    a("v_readfirstlane_b32 s29, v9")
    a("s_cmp_eq_u32 s29, 3")
    a("s_cbranch_scc0 KF_XEND")
    a("s_lshl_b32 s29, s37, 7")
    a(f"s_add_u32 s29, s29, {C_O}")
    a("v_mov_b32 v12, s29")
    a("s_mov_b64 exec, 1")
    a(f"global_atomic_add v12, v8, s[{S_WSP}:{S_WSP+1}] sc1")
    a("s_mov_b64 exec, -1")
    a.label("KF_XEND")
    if G.PROF:
        stamp(a, 6)
        stamp_flush(a, 0, 10, S_WAVE, S_WSP)
    a("s_endpgm")
    a.label("KF_Y")
    a("v_add_u32 v3, 4096, v2")
    for beta in range(4):
        a(f"s_add_u32 s29, s25, {beta}")
        a("s_and_b32 s29, s29, 3")
        a("s_lshl_b32 s29, s29, 10")
        a(f"v_add_u32 v{AV+beta}, s29, v2")
    a(f"s_mul_i32 s29, s27, {AF_RB}")
    a(f"s_add_u32 s29, s29, {WS_AF}")
    srd_off(a, 64, S_WSP, S_WSP+1, 29, AF_RB)
    a(f"s_mul_i32 s29, s28, {WF_J}")
    a(f"s_add_u32 s29, s29, {WS_WF}")
    srd_off(a, 68, S_WSP, S_WSP+1, 29, WF_J)
    srd(a, 8, S_PX, S_PX+1, 2048*1280)
    srd(a, 12, S_POUT, S_POUT+1, 2048*1280)
    a("s_lshr_b32 s29, s27, 2")
    a("s_lshl_b32 s29, s29, 7")
    a(f"s_add_u32 s29, s29, {C_O}")
    a("v_mov_b32 v254, s29")
    a(f"v_and_b32 v4, 15, v{V_LANE}")
    a("s_lshl_b32 s29, s27, 6")
    a("s_lshl_b32 s32, s25, 4")
    a("s_add_u32 s29, s29, s32")
    a("v_add_u32 v4, s29, v4")
    a("v_mul_u32_u24 v4, 1280, v4")
    a(f"v_lshrrev_b32 v7, 4, v{V_LANE}")
    a("v_lshl_add_u32 v4, v7, 3, v4")
    a("s_mul_i32 s29, s28, 160")
    a("v_add_u32 v4, s29, v4")
    vq = VQ(a)
    kqs = [(4*n, None) for n in range(13)] + [(52, 54)] + [(54 + 4*n, None) for n in range(5)]
    gate_n = 14
    NST = len(kqs)
    def set_off(n):
        base, lim = kqs[n]
        lines = [f"s_add_u32 s29, s25, {base}"]
        if lim is not None:
            lines += [f"s_cmp_lt_u32 s29, {lim}", "s_cselect_b32 s29, s29, 0x1000"]
        lines += ["s_lshl_b32 s30, s29, 12", "s_mul_i32 s31, s29, 5120"]
        return lines
    def loadW(n, aa):
        r = wf(n % D, aa)
        if aa < 4: return f"buffer_load_dwordx4 v[{r}:{r+3}], v2, s[68:71], s31 offen offset:{aa*1024} sc1"
        return f"buffer_load_dwordx4 v[{r}:{r+3}], v3, s[68:71], s31 offen sc1"
    def loadA(n, beta):
        r = af(n % D, beta)
        return f"buffer_load_dwordx4 v[{r}:{r+3}], v{AV+beta}, s[64:67], s30 offen sc1"
    for n in range(D):
        for ln in set_off(n): a(ln)
        for aa in range(5): vq.issue(loadW(n, aa), ('S', n))
        for beta in range(4): vq.issue(loadA(n, beta), ('S', n))
    for aa in range(5):
        vq.issue(f"buffer_load_dwordx2 v[{XR+2*aa}:{XR+2*aa+1}], v4, s[8:11], 0 offen offset:{32*aa}", ('X', aa))
    fl = gate_n - D - 1
    for n in range(NST):
        vq.need(lambda t: t == ('S', n))
        if n == fl: vq.issue(f"global_load_dword v255, v254, s[{S_WSP}:{S_WSP+1}] sc1", ('F', 0))
        if n == 0: stamp(a, 9)
        d = n % D
        nl = n + D
        more = nl < NST
        if more:
            if nl == gate_n:
                stamp(a, 5)
                vq.need(lambda t: t[0] == 'F')
                a(f"v_mov_b32 v12, {L_CNT}")
                a("s_cmp_lg_u32 s25, 0")
                a("s_cbranch_scc1 KF_ONOT0")
                poll(a, "KF_PO", 254, 255, 32, opt('osleep', 16), preloaded=True)
                a("v_mov_b32 v13, 1")
                a("ds_write_b32 v12, v13 offset:12")
                a("s_branch KF_OGO")
                a.label("KF_ONOT0")
                a("v_readfirstlane_b32 s29, v255")
                a("s_cmp_eq_u32 s29, 32")
                a("s_cbranch_scc1 KF_OGO")
                a.label("KF_OWAIT")
                a("ds_read_b32 v13, v12 offset:12")
                a("s_waitcnt lgkmcnt(0)")
                a("v_readfirstlane_b32 s29, v13")
                a("s_cmp_eq_u32 s29, 1")
                a("s_cbranch_scc1 KF_OGO")
                a("s_sleep 4")
                a("s_branch KF_OWAIT")
                a.label("KF_OGO")
                stamp(a, 6)
            for ln in set_off(nl): a(ln)
        for aa in range(5):
            for beta in range(4):
                c = "0" if n == 0 else f"v[{acc(aa,beta)}:{acc(aa,beta)+3}]"
                a(f"v_mfma_f32_16x16x32_bf16 v[{acc(aa,beta)}:{acc(aa,beta)+3}], v[{wf(d,aa)}:{wf(d,aa)+3}], v[{af(d,beta)}:{af(d,beta)+3}], {c}")
            if more: vq.issue(loadW(nl, aa), ('S', nl))
        if more:
            for beta in range(4): vq.issue(loadA(nl, beta), ('S', nl))
    stamp(a, 1)
    R = BUF
    for beta in range(1, 4):
        a(f"s_add_u32 s29, s25, {beta}")
        a("s_and_b32 s29, s29, 3")
        a("s_mul_i32 s29, s29, 15360")
        a(f"s_add_u32 s29, s29, {L_EX + (beta-1)*5120}")
        a(f"v_add_u32 v5, s29, v2")
        for aa in range(5):
            a(f"ds_write_b128 v5, v[{acc(aa,beta)}:{acc(aa,beta)+3}] offset:{aa*1024}")
    a("s_waitcnt lgkmcnt(0)")
    a("s_barrier")
    a("s_mul_i32 s29, s25, 15360")
    a(f"s_add_u32 s29, s29, {L_EX}")
    a(f"v_add_u32 v5, s29, v2")
    for sl in range(3):
        for aa in range(5):
            r = R + 20*sl + 4*aa
            a(f"ds_read_b128 v[{r}:{r+3}], v5 offset:{sl*5120 + aa*1024}")
    a("s_waitcnt vmcnt(0) lgkmcnt(0)")
    for sl in range(3):
        for aa in range(5):
            for e in range(4):
                a(f"v_add_f32 v{acc(aa,0)+e}, v{acc(aa,0)+e}, v{R + 20*sl + 4*aa + e}")
    for aa in range(5):
        x0, x1 = XR + 2*aa, XR + 2*aa + 1
        c = acc(aa, 0)
        a(f"v_lshlrev_b32 v6, 16, v{x0}")
        a(f"v_and_b32 v7, 0xffff0000, v{x0}")
        a(f"v_add_f32 v{c}, v{c}, v6")
        a(f"v_add_f32 v{c+1}, v{c+1}, v7")
        a(f"v_lshlrev_b32 v6, 16, v{x1}")
        a(f"v_and_b32 v7, 0xffff0000, v{x1}")
        a(f"v_add_f32 v{c+2}, v{c+2}, v6")
        a(f"v_add_f32 v{c+3}, v{c+3}, v7")
        a(f"v_cvt_pk_bf16_f32 v{x0}, v{c}, v{c+1}")
        a(f"v_cvt_pk_bf16_f32 v{x1}, v{c+2}, v{c+3}")
        a(f"buffer_store_dwordx2 v[{x0}:{x1}], v4, s[12:15], 0 offen offset:{32*aa}")
    if G.PROF:
        a("s_waitcnt vmcnt(0)")
        stamp(a, 4)
        stamp_flush(a, 0, 10, S_WAVE, S_WSP)

def gen_kf():
    a = Asm()
    k1_decode(a)
    for role, lab in (('A', 'K1_ATT'), ('F', 'K1_FFN')):
        a.label(lab)
        k1_prologue(a, role)
        k1_mainloop(a, role)
        stamp(a, 3)
        k1_correction(a, role)
        if role == 'A':
            k1_att_epilogue(a)
            role_end(a, 'A', [f"s_lshl_b32 s{S_T0}, s{S_CT}, 7", f"s_add_u32 s{S_T0}, s{S_T0}, {C_KV}"], S_WSP)
        else:
            k1_ffn_epilogue(a)
            role_end(a, 'F', [f"s_lshl_b32 s{S_T0}, s{S_RB}, 7", f"s_add_u32 s{S_T0}, s{S_T0}, {C_H}"], S_WSP)
    a.label("K1_SPARE")
    k1_spare(a)
    a.label("K1_END")
    role_end(a, 'S', [f"s_mov_b32 s{S_T0}, {4*D_WF}"], S_DBG)
    phase2(a)
    a.label("K1_EXIT")
    a("s_endpgm")
    return a
```

```python
import sys
from gencommon import *
from k1 import gen_k1, K1_LDS
from k2 import gen_k2, K2_LDS
from kf import gen_kf

def assemble(kernels, extra_hdr=()):
    hdr = list(extra_hdr)
    for name, a, lds, threads, vg in kernels:
        hdr.append(f"; @launch kernel={name} grid=(256,1,1) block=({threads},1,1) lds={lds}")
    hdr += ['.amdgcn_target "amdgcn-amd-amdhsa--gfx950"', ".text"]
    txt = "\n".join(hdr) + "\n"
    for name, a, lds, threads, vg in kernels:
        txt += "\n".join(kernel_header(name)) + "\n" + a.text()
    txt += '.section .rodata,"a"\n'
    for name, a, lds, threads, vg in kernels:
        txt += "\n".join(kernel_desc(name, vg)).replace("  .amdhsa_float_denorm_mode_32 3\n", "") + "\n"
    return txt

def build_all(fname, prof=False, **o):
    G.PROF = prof; G.OPT = o
    k1 = gen_k1(); k2 = gen_k2()
    full = assemble([("hh_k1_kernel", k1, K1_LDS, 512, 256), ("hh_k2_kernel", k2, K2_LDS, 512, 256)])
    open(fname, "w").write(full)
    G.PROF = False; G.OPT = {}
    return full

KNAME = "parallel_sum__linear_kernel_hedgehog__dense_activation_relu__prompt_kernel"
def build_fused(fname, prof=False, **o):
    G.PROF = prof; G.OPT = dict(o); G.OPT['fused'] = 1
    kf = gen_kf()
    full = assemble([(KNAME, kf, K1_LDS, 512, 256)])
    full = full.replace(f"; @launch kernel={KNAME} grid", "; @launch grid")
    open(fname, "w").write(full)
    G.PROF = False; G.OPT = {}
    return full

def install(full):
    ref = open("parallel_sum__linear_kernel_hedgehog__dense_activation_relu__prompt.s.ref").read().split("\n")
    hdr = []
    for ln in ref:
        if ln.startswith(";") and "@launch" not in ln and "Override launch" not in ln and "grid=ceil" not in ln: hdr.append(ln)
        elif not ln.startswith(";"): break
    open("parallel_sum__linear_kernel_hedgehog__dense_activation_relu__prompt.s", "w").write("\n".join(hdr) + "\n" + full)

if __name__ == "__main__":
    build_all("full_prof.s", True)
    build_all("full.s", False)
    build_fused("fused_prof.s", True)
    full = build_fused("fused.s", False)
    if len(sys.argv) > 1 and sys.argv[1] == "install": install(full)
    print("bytes", len(full))
```
